```python
import torch

def _softmax(x, axis=-1):
    return torch.softmax(x, dim=axis)
def _gelu(x):
    return torch.nn.functional.gelu(x, approximate="tanh")
def _silu(x):
    return torch.nn.functional.silu(x)
def _sigmoid(x):
    return torch.sigmoid(x)
def _layernorm(x, axis=-1, eps=1e-5):
    m = x.mean(dim=axis, keepdim=True)
    v = x.var(dim=axis, keepdim=True, unbiased=False)
    return (x - m) / torch.sqrt(v + eps)
def _scatter_add(tgt, idx, src, axis=0):
    return tgt.clone().index_add_(axis, idx, src)
def _segment_sum(src, seg, n):
    out = torch.zeros((n,) + src.shape[1:], dtype=src.dtype)
    return out.index_add_(0, seg, src)
def _pad(x, pw):
    flat = tuple(v for pair in reversed(pw) for v in pair)
    return torch.nn.functional.pad(x, flat)

kernel_name = 'standalone__linear_attn_block__prompt'

def setup_inputs():

    _w = (lambda a: (lambda t: t.to(torch.bfloat16) if t.is_floating_point() else t)(torch.as_tensor(a)))
    B, S, D = 1, 2048, 640
    return {
        "x": _w((lambda *s: torch.randn(*s, dtype=torch.bfloat16) * 0.05)(B, S, D)),
        "wqkv": _w((lambda *s: torch.randn(*s, dtype=torch.bfloat16) * 0.4)(D, 3 * D)),
        "wo": _w((lambda *s: torch.randn(*s, dtype=torch.bfloat16) * 0.05)(D, D)),
    }

def reference(x, wqkv, wo):
    B, S, D = x.shape
    H = 32; Dh = D // H
    qkv = (lambda x, *d: x.permute(*d))((x @ wqkv).reshape(B, S, 3, H, Dh), 2, 0, 3, 1, 4)
    q, k, v = qkv[0], qkv[1], qkv[2]
    phi = lambda t: torch.where(t > 0, t + 1, torch.exp(t)) + 1e-6
    pq, pk = phi(q), phi(k)
    kv = torch.einsum("bhsd,bhse->bhde", pk, v)
    z = torch.einsum("bhsd->bhd", pk)
    num = torch.einsum("bhqd,bhde->bhqe", pq, kv)
    den = torch.einsum("bhqd,bhd->bhq", pq, z)[..., None] + 1e-6
    o = num / den
    return (lambda x, *d: x.permute(*d))(o, 0, 2, 1, 3).reshape(B, S, D) @ wo
```

```python
import sys,os
FL=os.environ.get('FL','')

class Asm:
    def __init__(self):
        self.lines=[]
    def __call__(self, s, *a):
        t=(s % a if a else s)
        import re
        for ln in t.split("\n"):
            m=re.search(r"offset:(\d+)",ln)
            if m:
                o=int(m.group(1))
                assert o<=(4095 if ln.strip().startswith("buffer") else 65535), ln
        self.lines.append("    "+t)
    def label(self, l):
        self.lines.append(l+":")
    def raw(self, s):
        self.lines.append(s)
    def text(self):
        return "\n".join(self.lines)+"\n"

def interleave(main, fill, start=0, per=1):
    out=[]; fi=0
    for i,m in enumerate(main):
        out.append(m)
        if i>=start:
            for _ in range(per):
                if fi<len(fill):
                    out.append(fill[fi]); fi+=1
    out+=fill[fi:]
    return out

S,D=2048,640
WS_PQ   = 0
WS_PQS  = WS_PQ + S*D*2
WS_MF   = WS_PQS + S*D*2
WS_KVP  = WS_MF + D*D*2
WS_ZP   = WS_KVP + 16*32*400*4
WS_END  = WS_ZP + 16*640*4

def srd(a, d, lo, nbytes):
    a("s_mov_b32 s%d, s%d", d, lo)
    a("s_and_b32 s%d, s%d, 0xffff", d+1, lo+1)
    a("s_mov_b32 s%d, 0x%x", d+2, nbytes)
    a("s_mov_b32 s%d, 0x00020000", d+3)

def gen_k1(a, debug_acc=False):
    NST=4; STAGE=32768; NCH=10
    a.raw(".p2align 8"); a.label("k1_kernel")
    a("s_cmp_ge_u32 s2, 256"); a("s_cbranch_scc1 K1_END")
    a("s_load_dwordx2 s[4:5], s[0:1], 0")
    a("s_load_dwordx2 s[6:7], s[0:1], 8")
    a("s_load_dwordx2 s[8:9], s[0:1], 40")
    a("s_and_b32 s30, s2, 7")
    a("s_lshr_b32 s31, s2, 3")
    a("s_lshr_b32 s25, s30, 1"); a("s_lshl_b32 s25, s25, 2"); a("s_and_b32 s32, s31, 3"); a("s_add_u32 s25, s25, s32")
    a("s_and_b32 s26, s30, 1"); a("s_lshl_b32 s26, s26, 3"); a("s_lshr_b32 s32, s31, 2"); a("s_add_u32 s26, s26, s32")
    a("v_lshrrev_b32 v2, 6, v0"); a("v_and_b32 v1, 63, v0"); a("s_nop 0")
    a("v_readfirstlane_b32 s24, v2")
    a("v_lshrrev_b32 v2, 3, v1")
    a("v_mul_u32_u24 v2, 1280, v2")
    a("v_lshrrev_b32 v3, 4, v1")
    a("v_and_b32 v8, 7, v1")
    a("v_xor_b32 v9, v8, v3")
    a("v_lshl_add_u32 v4, v9, 4, v2")
    a("v_xor_b32 v9, 4, v9")
    a("v_lshl_add_u32 v5, v9, 4, v2")
    a("v_mul_u32_u24 v2, 3840, v3")
    a("v_and_b32 v8, 15, v1")
    a("v_lshlrev_b32 v9, 1, v3")
    a("v_xor_b32 v8, v8, v9")
    for par,dst in ((0,6),(1,7)):
        a("v_xor_b32 v10, %d, v8", 8*par)
        a("v_min_u32 v10, 14, v10")
        a("v_mul_u32_u24 v11, 52, v10"); a("v_lshrrev_b32 v11, 8, v11")
        a("v_mul_u32_u24 v11, 1200, v11")
        a("v_lshl_add_u32 v11, v10, 4, v11")
        a("v_add_u32 v%d, v11, v2", dst)
    a("v_and_b32 v2, 15, v1")
    a("v_lshrrev_b32 v3, 4, v1")
    a("s_waitcnt lgkmcnt(0)")
    a("s_lshl_b32 s32, s24, 5")
    a("v_add_u32 v8, s32, v2"); a("v_lshlrev_b32 v8, 7, v8")
    a("v_lshrrev_b32 v9, 1, v2")
    a("v_xor_b32 v10, v3, v9")
    a("v_lshl_add_u32 v12, v10, 4, v8")
    a("v_xor_b32 v10, 4, v10")
    a("v_lshl_add_u32 v13, v10, 4, v8")
    a("v_add_u32 v14, 0x10000, v12"); a("v_add_u32 v15, 0x10000, v13")
    a("v_lshrrev_b32 v8, 2, v2")
    a("v_lshl_add_u32 v9, v3, 3, v8")
    a("v_lshlrev_b32 v9, 8, v9"); a("v_add_u32 v9, 16384, v9")
    a("v_and_b32 v10, 1, v1"); a("v_lshl_add_u32 v9, v10, 3, v9")
    a("v_and_b32 v10, 1, v3"); a("v_lshlrev_b32 v10, 3, v10"); a("v_lshl_add_u32 v10, v8, 1, v10")
    a("v_bfe_u32 v11, v1, 1, 1")
    for ct in range(8):
        a("v_add_u32 v2, %d, v11", 2*ct); a("v_xor_b32 v2, v2, v10")
        a("v_lshl_add_u32 v%d, v2, 4, v9", 16+ct)
        a("v_add_u32 v%d, 0x10000, v%d", 24+ct, 16+ct)
    srd(a,12,4,S*D*2); srd(a,16,6,D*3*D*2); srd(a,20,8,WS_END)
    a("s_lshl_b32 s30, s25, 7"); a("s_lshl_b32 s31, s24, 5"); a("s_add_u32 s30, s30, s31"); a("s_mul_i32 s27, s30, 1280")
    a("s_mul_i32 s28, s24, %d", 16*3840); a("s_mul_i32 s30, s26, 80"); a("s_add_u32 s28, s28, s30")
    a("s_lshl_b32 s29, s24, 12")
    ACC=64
    FR=(128,168)
    for i in range(64): a("v_mov_b32 v%d, 0", ACC+i)
    def dma(t):
        st=(t%NST)*STAGE; L=[]
        if 'nodma' in FL: return L
        for jj in range(0 if 'noA' in FL else 4):
            L.append("s_add_u32 m0, s29, 0x%x"%(st+1024*jj))
            L.append("s_add_u32 s33, s27, 0x%x"%(8*jj*1280+t*128))
            L.append("buffer_load_dwordx4 v%d, s[12:15], s33 offen lds"%(4+(jj&1)))
        for jj in range(0 if 'noB' in FL else 4):
            L.append("s_add_u32 m0, s29, 0x%x"%(st+16384+1024*jj))
            L.append("s_add_u32 s34, s28, 0x%x"%(4*jj*3840+t*64*3840))
            L.append("buffer_load_dwordx4 v%d, s[16:19], s34 offen lds"%(6+(jj>>1)))
        return L
    def reads(t,ks,fs):
        st=t%NST; hi=st>>1; so=(st&1)*STAGE; F=FR[fs]; L=[]
        if 'noread' in FL: return L
        for rt in range(2):
            L.append("ds_read_b128 v[%d:%d], v%d offset:%d"%(F+rt*4,F+rt*4+3,12+2*hi+ks,so+2048*rt))
        for ct in range(8):
            for h in range(2):
                L.append("ds_read_b64_tr_b16 v[%d:%d], v%d offset:%d"%(F+8+ct*4+2*h,F+8+ct*4+2*h+1,16+8*hi+ct,so+8192*ks+1024*h))
        return L
    def mfmas(fs):
        F=FR[fs]; L=[]
        if 'nomfma' in FL: return L
        for ct in range(8):
            for rt in range(2):
                c=ACC+(rt*8+ct)*4
                L.append("v_mfma_f32_16x16x32_bf16 v[%d:%d], v[%d:%d], v[%d:%d], v[%d:%d]"%(c,c+3,F+rt*4,F+rt*4+3,F+8+ct*4,F+8+ct*4+3,c,c+3))
        return L
    for t in range(3):
        for l in dma(t): a(l)
    a("s_waitcnt vmcnt(16)"); a("s_barrier")
    for l in reads(0,0,0): a(l)
    for t in range(NCH):
        a("s_waitcnt lgkmcnt(0)")
        for l in interleave(mfmas(0), reads(t,1,1)): a(l)
        if t+1<NCH:
            a("s_waitcnt vmcnt(%d)"%(8 if t+2<NCH else 0))
            a("s_barrier")
        a("s_waitcnt lgkmcnt(0)")
        fill=[]
        if t+1<NCH: fill+=reads(t+1,0,0)
        d=dma(t+3) if t+3<NCH else []
        trip=["\n    ".join(d[i:i+3]) for i in range(0,len(d),3)]
        mm=mfmas(1)
        seq=interleave(mm, fill, per=2)
        for l in seq: a(l)
        for l in trip: a(l)
    return ACC


def gen_k1_epilogue(a, ACC):
    a("s_nop 7"); a("s_nop 1")
    a("s_mov_b32 s40, 0x3fb8aa3b")
    a("s_mov_b32 s41, 0x358637bd")
    T=128
    for rt in range(2):
        for ct in range(5):
            c=ACC+(rt*8+ct)*4
            for j in range(4):
                a("v_mul_f32 v%d, s40, v%d", T+j, c+j)
            for j in range(4):
                a("v_min_f32 v%d, 0, v%d", T+j, T+j)
            for j in range(4):
                a("v_exp_f32 v%d, v%d", T+j, T+j)
            for j in range(4):
                a("v_max_f32 v%d, 0, v%d", c+j, c+j)
            for j in range(4):
                a("v_add_f32 v%d, v%d, v%d", c+j, c+j, T+j)
            for j in range(4):
                a("v_add_f32 v%d, s41, v%d", c+j, c+j)
    a("v_and_b32 v2, 15, v1")
    a("v_cmp_le_u32 vcc, 8, v2"); a("s_nop 1")
    for rt in range(2):
        c=ACC+(rt*8+7)*4
        for j in range(4):
            a("v_cndmask_b32 v%d, v%d, 1.0, vcc", c+j, c+j)
    PK=132
    for ct in range(8):
        for rt in range(2):
            c=ACC+(rt*8+ct)*4
            a("v_cvt_pk_bf16_f32 v%d, v%d, v%d", PK+ct*4+rt*2, c, c+1)
            a("v_cvt_pk_bf16_f32 v%d, v%d, v%d", PK+ct*4+rt*2+1, c+2, c+3)
    KD=164
    a("s_nop 1")
    for ck in (2,3,4):
        for cv in (5,6,7):
            d=KD+((ck-2)*3+(cv-5))*4
            a("v_mfma_f32_16x16x32_bf16 v[%d:%d], v[%d:%d], v[%d:%d], 0", d,d+3, PK+ck*4,PK+ck*4+3, PK+cv*4,PK+cv*4+3)
    a("s_barrier")
    a("v_and_b32 v2, 15, v1"); a("v_lshrrev_b32 v3, 4, v1")
    a("s_lshl_b32 s32, s24, 5")
    a("v_lshl_add_u32 v8, v3, 2, s32")
    a("v_mul_u32_u24 v8, 80, v8")
    a("v_lshl_add_u32 v8, v2, 1, v8")
    for rt in range(2):
        for ct in range(2):
            for p in range(2):
                r=PK+ct*4+rt*2+p; off=(16*rt+2*p)*80+32*ct
                a("ds_write_b16 v8, v%d offset:%d", r, off)
                a("ds_write_b16_d16_hi v8, v%d offset:%d", r, off+80)
    a("v_cmp_gt_u32 vcc, 8, v2"); a("s_and_saveexec_b64 s[36:37], vcc")
    for rt in range(2):
        for p in range(2):
            r=PK+2*4+rt*2+p; off=(16*rt+2*p)*80+64
            a("ds_write_b16 v8, v%d offset:%d", r, off)
            a("ds_write_b16_d16_hi v8, v%d offset:%d", r, off+80)
    a("s_mov_b64 exec, s[36:37]")
    a("s_mul_i32 s33, s24, 9216"); a("s_add_u32 s33, s33, 16384")
    a("v_lshlrev_b32 v9, 2, v3"); a("v_mul_u32_u24 v9, 192, v9"); a("v_lshl_add_u32 v9, v2, 2, v9"); a("v_add_u32 v9, s33, v9")
    a("s_nop 2")
    for ck in (2,3,4):
        for cv in (5,6,7):
            d=KD+((ck-2)*3+(cv-5))*4
            for j in range(4):
                a("ds_write_b32 v9, v%d offset:%d", d+j, ((ck-2)*16+j)*192+(cv-5)*64)
    a("s_waitcnt lgkmcnt(0)")
    a("s_barrier")
    for it in range(3):
        a("v_add_u32 v10, %d, v1", 64*it)
        a("v_mul_u32_u24 v11, 0x3334, v10"); a("v_lshrrev_b32 v11, 16, v11")
        a("v_mul_u32_u24 v2, 5, v11"); a("v_sub_u32 v2, v10, v2")
        a("v_add_u32 v3, s32, v11")
        a("v_mul_u32_u24 v8, 80, v3"); a("v_lshl_add_u32 v8, v2, 4, v8")
        if it==2:
            a("v_cmp_gt_u32 vcc, 32, v1"); a("s_and_saveexec_b64 s[36:37], vcc")
        a("ds_read_b128 v[%d:%d], v8", 200+4*it, 203+4*it)
        a("s_lshl_b32 s33, s25, 7"); a("v_add_u32 v3, s33, v3")
        a("v_mul_u32_u24 v3, 1280, v3"); a("v_lshl_add_u32 v3, v2, 4, v3")
        a("s_mul_i32 s33, s26, 80"); a("v_add_u32 v%d, s33, v3", 212+it)
        if it==2: a("s_mov_b64 exec, s[36:37]")
    a("s_waitcnt lgkmcnt(0)")
    for it in range(3):
        if it==2:
            a("v_cmp_gt_u32 vcc, 32, v1"); a("s_and_saveexec_b64 s[36:37], vcc")
        a("buffer_store_dwordx4 v[%d:%d], v%d, s[20:23], 0 offen", 200+4*it, 203+4*it, 212+it)
        if it==2: a("s_mov_b64 exec, s[36:37]")
    a("v_cmp_gt_u32 vcc, 160, v0"); a("s_and_saveexec_b64 s[36:37], vcc")
    a("v_lshrrev_b32 v2, 2, v0"); a("v_and_b32 v3, 3, v0")
    a("v_cmp_le_u32 vcc, 20, v2"); a("s_nop 1"); a("v_cndmask_b32 v8, 0, 1, vcc")
    a("v_add_u32 v9, 8, v2"); a("v_mul_u32_u24 v9, 192, v9")
    a("v_mul_u32_u24 v10, 20, v8"); a("v_mul_u32_u24 v11, 5, v3"); a("v_add_u32 v10, v10, v11")
    a("v_lshl_add_u32 v9, v10, 2, v9"); a("v_add_u32 v9, 16384, v9")
    for w in range(4):
        for i in range(5):
            a("ds_read_b32 v%d, v9 offset:%d", 140+w*5+i, w*9216+4*i)
    a("v_add_u32 v9, 8, v2"); a("v_mul_u32_u24 v9, 192, v9"); a("v_add_u32 v9, %d, v9", 16384+160)
    for w in range(4):
        a("ds_read_b32 v%d, v9 offset:%d", 160+w, w*9216)
    a("s_waitcnt lgkmcnt(0)")
    for i in range(5):
        a("v_add_f32 v%d, v%d, v%d", 140+i, 140+i, 145+i)
        a("v_add_f32 v%d, v%d, v%d", 150+i, 150+i, 155+i)
        a("v_add_f32 v%d, v%d, v%d", 140+i, 140+i, 150+i)
    a("v_add_f32 v160, v160, v161"); a("v_add_f32 v162, v162, v163"); a("v_add_f32 v160, v160, v162")
    a("s_lshl_b32 s33, s25, 5"); a("s_lshl_b32 s34, s26, 1"); a("s_add_u32 s33, s33, s34"); a("s_mul_i32 s33, s33, 1600"); a("s_add_u32 s33, s33, 0x%x", WS_KVP)
    a("v_mul_u32_u24 v9, 20, v2"); a("v_add_u32 v9, v9, v11"); a("v_lshl_add_u32 v9, v9, 2, s33")
    for i in range(5):
        a("buffer_store_dword v%d, v9, s[20:23], 0 offen offset:%d", 140+i, 4*i)
    a("s_mul_i32 s33, s25, 2560"); a("s_mul_i32 s34, s26, 160"); a("s_add_u32 s33, s33, s34"); a("s_add_u32 s33, s33, 0x%x", WS_ZP)
    a("v_lshl_add_u32 v9, v2, 2, s33")
    a("v_cmp_eq_u32 vcc, 0, v3"); a("s_and_b64 exec, exec, vcc")
    a("buffer_store_dword v160, v9, s[20:23], 0 offen")
    a("s_mov_b64 exec, s[36:37]")
    a.label("K1_END")
    a("s_endpgm")


def bf16round(a, v, t):
    a("v_cvt_pk_bf16_f32 v%d, v%d, v%d", t, v, v)
    a("v_lshlrev_b32 v%d, 16, v%d", v, t)

def gen_k2(a):
    a.raw(".p2align 8"); a.label("k2_kernel")
    a("s_cmp_ge_u32 s2, 256"); a("s_cbranch_scc1 K2_END")
    a("s_load_dwordx2 s[4:5], s[0:1], 16")
    a("s_load_dwordx2 s[8:9], s[0:1], 40")
    a("s_lshr_b32 s24, s2, 3")
    a("s_and_b32 s25, s2, 7")
    a("v_lshlrev_b32 v1, 2, v0")
    a("s_waitcnt lgkmcnt(0)")
    srd(a,12,4,D*D*2); srd(a,20,8,WS_END)
    for c in range(3):
        for p in range(16):
            a("buffer_load_dword v%d, v1, s[20:23], 0 offen offset:%d"%(16+c*16+p, 0) if False else "s_mov_b32 s30, 0x%x"%(WS_ZP+p*2560+c*1024))
            a("buffer_load_dword v%d, v1, s[20:23], s30 offen"%(16+c*16+p))
    a("s_mul_i32 s31, s24, 1600"); a("s_add_u32 s31, s31, 0x%x", WS_KVP)
    for c in range(2):
        for p in range(16):
            a("s_add_u32 s30, s31, 0x%x", p*32*1600+c*1024)
            a("buffer_load_dword v%d, v1, s[20:23], s30 offen"%(64+c*16+p))
    a("v_mul_u32_u24 v2, 0x667, v0"); a("v_lshrrev_b32 v2, 16, v2")
    a("v_mul_u32_u24 v3, 40, v2"); a("v_sub_u32 v3, v0, v3")
    a("v_min_u32 v2, 4, v2")
    a("s_mul_i32 s30, s24, %d", 20*1280); a("s_mul_i32 s31, s25, 160"); a("s_add_u32 s30, s30, s31")
    a("v_lshlrev_b32 v4, 2, v3"); a("v_add_u32 v4, s30, v4")
    for e in range(20):
        a("s_mov_b32 s31, %d", e*1280)
        a("buffer_load_dword v%d, v4, s[12:15], s31 offen", 100+e)
    a("v_lshrrev_b32 v5, 5, v0"); a("s_lshl_b32 s30, s2, 3"); a("v_add_u32 v5, s30, v5"); a("v_mul_u32_u24 v5, 1280, v5")
    a("v_and_b32 v6, 31, v0"); a("v_mul_u32_u24 v7, 40, v6"); a("v_add_u32 v5, v5, v7")
    for i in range(5):
        a("buffer_load_dwordx2 v[%d:%d], v5, s[20:23], 0 offen offset:%d", 120+2*i, 121+2*i, 8*i)
    a("s_waitcnt vmcnt(57)")
    for c in range(3):
        b=16+c*16
        for st in (8,4,2,1):
            for p in range(st): a("v_add_f32 v%d, v%d, v%d", b+p, b+p, b+p+st)
        bf16round(a,b,8)
    a("ds_write_b32 v1, v16"); a("ds_write_b32 v1, v32 offset:1024")
    a("v_cmp_gt_u32 vcc, 128, v0"); a("s_and_saveexec_b64 s[36:37], vcc")
    a("ds_write_b32 v1, v48 offset:2048"); a("s_mov_b64 exec, s[36:37]")
    a("s_waitcnt vmcnt(25)")
    for c in range(2):
        b=64+c*16
        for st in (8,4,2,1):
            for p in range(st): a("v_add_f32 v%d, v%d, v%d", b+p, b+p, b+p+st)
        bf16round(a,b,8)
    a("ds_write_b32 v1, v64 offset:4096")
    a("v_cmp_gt_u32 vcc, 144, v0"); a("s_and_saveexec_b64 s[36:37], vcc")
    a("ds_write_b32 v1, v80 offset:5120"); a("s_mov_b64 exec, s[36:37]")
    a("s_waitcnt lgkmcnt(0)"); a("s_barrier")
    for i in range(8): a("v_mov_b32 v%d, 0", 140+i)
    a("v_mul_u32_u24 v8, 320, v2")
    a("s_waitcnt vmcnt(5)")
    for d in range(4):
        for e4 in range(5):
            a("ds_read_b128 v[%d:%d], v8 offset:%d", 160+(d*5+e4)*4, 163+(d*5+e4)*4, 4096+d*80+e4*16)
    for e in range(20):
        a("v_lshlrev_b32 v%d, 16, v%d", 16+e, 100+e)
        a("v_and_b32 v%d, 0xffff0000, v%d", 36+e, 100+e)
    a("s_waitcnt lgkmcnt(0)")
    for d in range(4):
        for e in range(20):
            a("v_fmac_f32 v%d, v%d, v%d", 140+2*d, 160+d*20+e, 16+e)
            a("v_fmac_f32 v%d, v%d, v%d", 141+2*d, 160+d*20+e, 36+e)
    for d in range(4):
        a("v_cvt_pk_bf16_f32 v%d, v%d, v%d", 150+d, 140+2*d, 141+2*d)
    a("s_mul_i32 s30, s25, 102400"); a("s_mul_i32 s31, s24, 3200"); a("s_add_u32 s30, s30, s31"); a("s_add_u32 s30, s30, 0x%x", WS_MF)
    a("v_mul_u32_u24 v8, 640, v2"); a("v_lshl_add_u32 v8, v3, 2, v8"); a("v_add_u32 v8, s30, v8")
    a("v_cmp_gt_u32 vcc, 200, v0"); a("s_and_saveexec_b64 s[36:37], vcc")
    for d in range(4):
        a("buffer_store_dword v%d, v8, s[20:23], 0 offen offset:%d", 150+d, d*160)
    a("s_mov_b64 exec, s[36:37]")
    a("v_mul_u32_u24 v8, 80, v6")
    for i in range(5):
        a("ds_read_b128 v[%d:%d], v8 offset:%d", 160+4*i, 163+4*i, 16*i)
    a("s_waitcnt vmcnt(4)")
    for i in range(10):
        a("v_lshlrev_b32 v%d, 16, v%d", 200+2*i, 120+i)
        a("v_and_b32 v%d, 0xffff0000, v%d", 201+2*i, 120+i)
    a("s_waitcnt lgkmcnt(0)")
    a("v_mov_b32 v9, 0x358637bd")
    for i in range(20):
        a("v_fmac_f32 v9, v%d, v%d", 200+i, 160+i)
    a("v_rcp_f32 v9, v9"); a("s_nop 0")
    for i in range(20):
        a("v_mul_f32 v%d, v9, v%d", 200+i, 200+i)
    for i in range(10):
        a("v_cvt_pk_bf16_f32 v%d, v%d, v%d", 120+i, 200+2*i, 201+2*i)
    a("v_add_u32 v5, 0x%x, v5", WS_PQS)
    for i in range(5):
        a("buffer_store_dwordx2 v[%d:%d], v5, s[20:23], 0 offen offset:%d", 120+2*i, 121+2*i, 8*i)
    a.label("K2_END")
    a("s_endpgm")

def gen_k3(a):
    NST=3; STAGE=40960; NCH=5
    a.raw(".p2align 8"); a.label("k3_kernel")
    a("s_cmp_ge_u32 s2, 256"); a("s_cbranch_scc1 K3_END")
    a("s_load_dwordx2 s[4:5], s[0:1], 24")
    a("s_load_dwordx2 s[8:9], s[0:1], 40")
    a("s_and_b32 s30, s2, 7"); a("s_lshr_b32 s31, s2, 3")
    a("s_lshr_b32 s25, s30, 1"); a("s_lshl_b32 s25, s25, 3"); a("s_and_b32 s32, s31, 7"); a("s_add_u32 s25, s25, s32")
    a("s_and_b32 s26, s30, 1"); a("s_lshl_b32 s26, s26, 2"); a("s_lshr_b32 s32, s31, 3"); a("s_add_u32 s26, s26, s32")
    a("v_lshrrev_b32 v2, 6, v0"); a("v_and_b32 v1, 63, v0"); a("s_nop 0")
    a("v_readfirstlane_b32 s24, v2")
    a("v_lshrrev_b32 v3, 4, v1"); a("v_mul_u32_u24 v2, 1280, v3"); a("v_and_b32 v8, 15, v1")
    for jj in range(4):
        a("v_add_u32 v9, %d, v3", 4*jj); a("v_xor_b32 v9, v8, v9"); a("v_lshl_add_u32 v%d, v9, 4, v2", 4+jj)
    a("s_nop 0")
    a("s_mul_i32 s32, s24, 384")
    a("s_mov_b32 s33, 43691")
    for jj in range(6):
        a("v_add_u32 v14, s32, v1"); a("v_add_u32 v14, %d, v14", 64*jj)
        a("v_mul_lo_u32 v15, v14, s33"); a("v_lshrrev_b32 v15, 19, v15")
        a("v_mul_u32_u24 v16, 12, v15"); a("v_sub_u32 v16, v14, v16")
        a("v_bfe_u32 v17, v15, 3, 1"); a("v_lshlrev_b32 v17, 1, v17"); a("v_xor_b32 v16, v16, v17"); a("v_min_u32 v16, 9, v16")
        a("v_mul_u32_u24 v15, 160, v15"); a("v_lshl_add_u32 v%d, v16, 4, v15", 8+jj)
    a("v_and_b32 v2, 15, v1"); a("v_lshrrev_b32 v3, 4, v1")
    a("s_lshl_b32 s32, s24, 4"); a("v_add_u32 v14, s32, v2"); a("v_lshlrev_b32 v14, 8, v14")
    for ks in range(4):
        a("v_add_u32 v15, %d, v3", 4*ks); a("v_xor_b32 v15, v15, v2"); a("v_lshl_add_u32 v%d, v15, 4, v14", 16+ks)
        a("v_add_u32 v%d, 0x%x, v%d", 20+ks, 2*STAGE, 16+ks)
    a("v_lshrrev_b32 v14, 2, v2"); a("v_lshl_add_u32 v14, v3, 3, v14"); a("v_mul_u32_u24 v14, 192, v14"); a("v_add_u32 v14, 16384, v14")
    a("v_and_b32 v15, 1, v1"); a("v_lshl_add_u32 v14, v15, 3, v14")
    a("v_and_b32 v15, 1, v3"); a("v_lshlrev_b32 v15, 1, v15"); a("v_bfe_u32 v34, v1, 1, 1")
    for ct in range(5):
        a("v_add_u32 v35, %d, v34", 2*ct); a("v_xor_b32 v35, v35, v15"); a("v_lshl_add_u32 v%d, v35, 4, v14", 24+ct)
        a("v_add_u32 v%d, 0x%x, v%d", 29+ct, 2*STAGE, 24+ct)
    a("s_waitcnt lgkmcnt(0)")
    srd(a,12,4,S*D*2); srd(a,20,8,WS_END)
    a("s_lshl_b32 s30, s25, 6"); a("s_lshl_b32 s31, s24, 4"); a("s_add_u32 s30, s30, s31"); a("s_mul_i32 s27, s30, 1280"); a("s_add_u32 s27, s27, 0x%x", WS_PQS)
    a("s_mul_i32 s28, s26, 102400"); a("s_add_u32 s28, s28, 0x%x", WS_MF)
    a("s_lshl_b32 s29, s24, 12"); a("s_mul_i32 s35, s24, 6144")
    ACC=64; FR=(96,120)
    for i in range(20): a("v_mov_b32 v%d, 0", ACC+i)
    def dma(t):
        st=(t%NST)*STAGE; L=[]
        for jj in range(4):
            L.append("s_add_u32 m0, s29, 0x%x"%(st+1024*jj))
            L.append("s_add_u32 s33, s27, 0x%x"%(4*jj*1280+t*256))
            L.append("buffer_load_dwordx4 v%d, s[20:23], s33 offen lds"%(4+jj))
        for jj in range(6):
            L.append("s_add_u32 m0, s35, 0x%x"%(st+16384+1024*jj))
            L.append("s_add_u32 s34, s28, 0x%x"%(t*128*160))
            L.append("buffer_load_dwordx4 v%d, s[20:23], s34 offen lds"%(8+jj))
        return L
    def reads(t,ks,fs):
        st=t%NST; hi=1 if st==2 else 0; so=STAGE if st==1 else 0; F=FR[fs]; L=[]
        L.append("ds_read_b128 v[%d:%d], v%d offset:%d"%(F,F+3,16+4*hi+ks,so))
        for ct in range(5):
            for h in range(2):
                L.append("ds_read_b64_tr_b16 v[%d:%d], v%d offset:%d"%(F+4+ct*4+2*h,F+4+ct*4+2*h+1,24+5*hi+ct,so+6144*ks+768*h))
        return L
    def mfmas(fs):
        F=FR[fs]; L=[]
        for ct in range(5):
            c=ACC+ct*4
            L.append("v_mfma_f32_16x16x32_bf16 v[%d:%d], v[%d:%d], v[%d:%d], v[%d:%d]"%(c,c+3,F,F+3,F+4+ct*4,F+4+ct*4+3,c,c+3))
        return L
    for t in range(2):
        for l in dma(t): a(l)
    a("s_waitcnt vmcnt(10)"); a("s_barrier")
    for l in reads(0,0,0): a(l)
    step=0
    for t in range(NCH):
        for ks in range(4):
            fs=step&1
            a("s_waitcnt lgkmcnt(0)")
            if ks==3 and t+1<NCH:
                a("s_waitcnt vmcnt(0)"); a("s_barrier")
            if ks<3: nx=reads(t,ks+1,fs^1)
            elif t+1<NCH: nx=reads(t+1,0,fs^1)
            else: nx=[]
            for l in interleave(mfmas(fs), nx, per=3): a(l)
            if ks==3 and t+2<NCH:
                for l in dma(t+2): a(l)
            step+=1
    a("s_nop 7"); a("s_nop 1"); a("s_barrier")
    a("v_and_b32 v2, 15, v1"); a("v_lshrrev_b32 v3, 4, v1")
    a("s_lshl_b32 s32, s24, 4")
    a("v_lshl_add_u32 v8, v3, 2, s32"); a("v_mul_u32_u24 v8, 176, v8"); a("v_lshl_add_u32 v8, v2, 1, v8")
    for ct in range(5):
        c=ACC+ct*4
        a("v_cvt_pk_bf16_f32 v%d, v%d, v%d", 96+2*ct, c, c+1)
        a("v_cvt_pk_bf16_f32 v%d, v%d, v%d", 97+2*ct, c+2, c+3)
    for ct in range(5):
        for p in range(2):
            a("ds_write_b16 v8, v%d offset:%d", 96+2*ct+p, 2*p*176+32*ct)
            a("ds_write_b16_d16_hi v8, v%d offset:%d", 96+2*ct+p, (2*p+1)*176+32*ct)
    a("s_waitcnt lgkmcnt(0)")
    for it in range(3):
        a("v_add_u32 v10, %d, v1", 64*it)
        a("v_mul_u32_u24 v11, 0x199a, v10"); a("v_lshrrev_b32 v11, 16, v11")
        a("v_mul_u32_u24 v2, 10, v11"); a("v_sub_u32 v2, v10, v2")
        a("v_add_u32 v3, s32, v11")
        a("v_mul_u32_u24 v8, 176, v3"); a("v_lshl_add_u32 v8, v2, 4, v8")
        if it==2:
            a("v_cmp_gt_u32 vcc, 32, v1"); a("s_and_saveexec_b64 s[36:37], vcc")
        a("ds_read_b128 v[%d:%d], v8", 120+4*it, 123+4*it)
        a("s_lshl_b32 s33, s25, 6"); a("v_add_u32 v3, s33, v3"); a("v_mul_u32_u24 v3, 1280, v3"); a("v_lshl_add_u32 v3, v2, 4, v3")
        a("s_mul_i32 s33, s26, 160"); a("v_add_u32 v%d, s33, v3", 136+it)
        if it==2: a("s_mov_b64 exec, s[36:37]")
    a("s_waitcnt lgkmcnt(0)")
    for it in range(3):
        if it==2:
            a("v_cmp_gt_u32 vcc, 32, v1"); a("s_and_saveexec_b64 s[36:37], vcc")
        a("buffer_store_dwordx4 v[%d:%d], v%d, s[12:15], 0 offen", 120+4*it, 123+4*it, 136+it)
        if it==2: a("s_mov_b64 exec, s[36:37]")
    a.label("K3_END")
    a("s_endpgm")

def kd(a, name, vgpr, sgpr=64):
    a.raw(".p2align 6")
    a.raw(".amdhsa_kernel %s"%name)
    a.raw("  .amdhsa_next_free_vgpr %d"%vgpr)
    a.raw("  .amdhsa_next_free_sgpr %d"%sgpr)
    a.raw("  .amdhsa_accum_offset %d"%vgpr)
    a.raw("  .amdhsa_group_segment_fixed_size 0")
    a.raw("  .amdhsa_kernarg_size 48")
    a.raw("  .amdhsa_user_sgpr_count 2")
    a.raw("  .amdhsa_user_sgpr_kernarg_segment_ptr 1")
    a.raw("  .amdhsa_system_sgpr_workgroup_id_x 1")
    a.raw(".end_amdhsa_kernel")

def main():
    a=Asm()
    a.raw("; @launch kernel=k1_kernel grid=(256,1,1) block=(256,1,1) lds=131072")
    a.raw("; @launch kernel=k2_kernel grid=(256,1,1) block=(256,1,1) lds=8192")
    a.raw("; @launch kernel=k3_kernel grid=(256,1,1) block=(256,1,1) lds=122880")
    a.raw('.amdgcn_target "amdgcn-amd-amdhsa--gfx950"')
    a.raw(".text")
    ACC=gen_k1(a)
    if 'noepi' in FL:
        a.label('K1_END'); a('s_endpgm')
    else: gen_k1_epilogue(a,ACC)
    gen_k2(a); gen_k3(a)
    a.raw('.section .rodata,"a"')
    kd(a,"k1_kernel",224); kd(a,"k2_kernel",248); kd(a,"k3_kernel",144)
    open(sys.argv[1],"w").write(a.text())
main()
```

```python
import sys,os
FL=os.environ.get('FL','')

class Asm:
    def __init__(self):
        self.lines=[]
    def __call__(self, s, *a):
        t=(s % a if a else s)
        import re
        for ln in t.split("\n"):
            m=re.search(r"offset:(\d+)",ln)
            if m:
                o=int(m.group(1))
                assert o<=(4095 if ln.strip().startswith("buffer") else 65535), ln
        self.lines.append("    "+t)
    def label(self, l):
        self.lines.append(l+":")
    def raw(self, s):
        self.lines.append(s)
    def text(self):
        return "\n".join(self.lines)+"\n"

def interleave(main, fill, start=0, per=1):
    out=[]; fi=0
    for i,m in enumerate(main):
        out.append(m)
        if i>=start:
            for _ in range(per):
                if fi<len(fill):
                    out.append(fill[fi]); fi+=1
    out+=fill[fi:]
    return out

S,D=2048,640
WS_PQ   = 0
WS_PQS  = WS_PQ + S*D*2
WS_MF   = WS_PQS + S*D*2
WS_KVP  = WS_MF + D*D*2
WS_ZP   = WS_KVP + 16*32*400*4
WS_END  = WS_ZP + 16*640*4

TSN=[0]
def ts(a):
    if 'ts' not in FL: return
    i=TSN[0]; TSN[0]+=1
    a("s_memrealtime s[%d:%d]", 60+2*i, 61+2*i)
def ts_flush(a, srdreg, off):
    if 'ts' not in FL: return
    a("s_waitcnt lgkmcnt(0)")
    n=TSN[0]
    a("v_mov_b32 v250, 0")
    for i in range(n):
        a("v_mov_b32 v251, s%d", 60+2*i)
        a("s_mul_i32 s59, s2, 64"); a("s_add_u32 s59, s59, 0x%x", off+4*i)
        a("v_cmp_eq_u32 vcc, 0, v0"); a("s_and_saveexec_b64 s[56:57], vcc")
        a("buffer_store_dword v251, v250, s[%d:%d], s59 offen", srdreg, srdreg+3)
        a("s_mov_b64 exec, s[56:57]")
    TSN[0]=0

def srd(a, d, lo, nbytes):
    a("s_mov_b32 s%d, s%d", d, lo)
    a("s_and_b32 s%d, s%d, 0xffff", d+1, lo+1)
    a("s_mov_b32 s%d, 0x%x", d+2, nbytes)
    a("s_mov_b32 s%d, 0x00020000", d+3)

def gen_k1(a):
    NST=5; STAGE=32768; NCH=10; PD=4
    a.raw(".p2align 8"); a.label("k1_kernel")
    a("s_cmp_ge_u32 s2, 256"); a("s_cbranch_scc1 K1_END")
    ts(a)
    a("s_load_dwordx2 s[4:5], s[0:1], 0")
    a("s_load_dwordx2 s[6:7], s[0:1], 8")
    a("s_load_dwordx2 s[8:9], s[0:1], 40")
    a("s_and_b32 s30, s2, 7"); a("s_lshr_b32 s31, s2, 3")
    a("s_lshr_b32 s25, s30, 1"); a("s_lshl_b32 s25, s25, 2"); a("s_and_b32 s32, s31, 3"); a("s_add_u32 s25, s25, s32")
    a("s_and_b32 s26, s30, 1"); a("s_lshl_b32 s26, s26, 3"); a("s_lshr_b32 s32, s31, 2"); a("s_add_u32 s26, s26, s32")
    a("v_lshrrev_b32 v2, 6, v0"); a("v_and_b32 v1, 63, v0"); a("s_nop 0")
    a("v_readfirstlane_b32 s24, v2")
    a("v_lshrrev_b32 v2, 3, v1"); a("v_mul_u32_u24 v2, 1280, v2"); a("v_lshrrev_b32 v3, 4, v1"); a("v_and_b32 v8, 7, v1")
    a("v_xor_b32 v9, v8, v3"); a("v_lshl_add_u32 v4, v9, 4, v2"); a("v_xor_b32 v9, 4, v9"); a("v_lshl_add_u32 v5, v9, 4, v2")
    a("v_mul_u32_u24 v2, 3840, v3"); a("v_and_b32 v8, 15, v1"); a("v_lshlrev_b32 v9, 1, v3"); a("v_xor_b32 v8, v8, v9")
    a("s_and_b32 s30, s24, 1"); a("s_lshl_b32 s30, s30, 3")
    a("v_xor_b32 v10, s30, v8"); a("v_min_u32 v10, 14, v10")
    a("v_mul_u32_u24 v11, 52, v10"); a("v_lshrrev_b32 v11, 8, v11"); a("v_mul_u32_u24 v11, 1200, v11")
    a("v_lshl_add_u32 v11, v10, 4, v11"); a("v_add_u32 v6, v11, v2")
    a("s_and_b32 s30, s26, 1"); a("s_mul_i32 s30, s30, 80"); a("s_sub_u32 s31, 80, s30")
    a("v_cmp_gt_u32 vcc, 5, v10"); a("v_mov_b32 v11, s31"); a("v_mov_b32 v9, s30"); a("v_cndmask_b32 v11, v9, v11, vcc"); a("v_add_u32 v6, v6, v11")
    a("s_waitcnt lgkmcnt(0)")
    ts(a)
    srd(a,12,4,S*D*2); srd(a,16,6,D*3*D*2); srd(a,20,8,WS_END if 'ts' not in FL else 0x1000000)
    a("s_lshl_b32 s30, s25, 7"); a("s_lshl_b32 s31, s24, 4"); a("s_add_u32 s30, s30, s31"); a("s_mul_i32 s27, s30, 1280")
    a("s_mul_i32 s28, s24, %d", 8*3840); a("s_and_b32 s30, s26, -2"); a("s_mul_i32 s30, s30, 80"); a("s_add_u32 s28, s28, s30")
    a("s_lshl_b32 s29, s24, 11")
    def dma(t):
        st=(t%NST)*STAGE; L=[]
        for jj in range(2):
            L.append("s_add_u32 m0, s29, 0x%x\n    s_add_u32 s33, s27, 0x%x\n    buffer_load_dwordx4 v%d, s[12:15], s33 offen lds"%(st+1024*jj, 8*jj*1280+t*128, 4+jj))
        for jj in range(2):
            L.append("s_add_u32 m0, s29, 0x%x\n    s_add_u32 s34, s28, 0x%x\n    buffer_load_dwordx4 v6, s[16:19], s34 offen lds"%(st+16384+1024*jj, 4*jj*3840+t*64*3840))
        return L
    for t in range(PD):
        for l in dma(t): a(l)
    a("v_and_b32 v2, 15, v1"); a("v_lshrrev_b32 v3, 4, v1")
    a("s_lshl_b32 s32, s24, 4")
    a("v_add_u32 v8, s32, v2"); a("v_lshlrev_b32 v8, 7, v8"); a("v_lshrrev_b32 v9, 1, v2"); a("v_xor_b32 v10, v3, v9")
    a("v_lshl_add_u32 v12, v10, 4, v8"); a("v_xor_b32 v10, 4, v10"); a("v_lshl_add_u32 v13, v10, 4, v8")
    for hi in (1,2):
        a("v_add_u32 v%d, 0x%x, v12", 12+2*hi, hi*65536); a("v_add_u32 v%d, 0x%x, v13", 13+2*hi, hi*65536)
    a("v_lshrrev_b32 v8, 2, v2"); a("v_lshl_add_u32 v9, v3, 3, v8"); a("v_lshlrev_b32 v9, 8, v9"); a("v_add_u32 v9, 16384, v9")
    a("v_and_b32 v10, 1, v1"); a("v_lshl_add_u32 v9, v10, 3, v9")
    a("v_and_b32 v10, 1, v3"); a("v_lshlrev_b32 v10, 3, v10"); a("v_lshl_add_u32 v10, v8, 1, v10")
    a("v_bfe_u32 v11, v1, 1, 1")
    for ct in range(8):
        a("v_add_u32 v2, %d, v11", 2*ct); a("v_xor_b32 v2, v2, v10"); a("v_lshl_add_u32 v%d, v2, 4, v9", 20+ct)
        a("v_add_u32 v%d, 0x10000, v%d", 28+ct, 20+ct); a("v_add_u32 v%d, 0x20000, v%d", 36+ct, 20+ct)
    ACC=48; FR=(80,116)
    for i in range(32): a("v_mov_b32 v%d, 0", ACC+i)
    def reads(t,ks,fs):
        st=t%NST; hi=st>>1; so=(st&1)*STAGE; F=FR[fs]; L=[]
        L.append("ds_read_b128 v[%d:%d], v%d offset:%d"%(F,F+3,12+2*hi+ks,so))
        for ct in range(8):
            for h in range(2):
                L.append("ds_read_b64_tr_b16 v[%d:%d], v%d offset:%d"%(F+4+ct*4+2*h,F+4+ct*4+2*h+1,20+8*hi+ct,so+8192*ks+1024*h))
        return L
    def mfmas(fs):
        F=FR[fs]; L=[]
        for ct in range(8):
            c=ACC+ct*4
            L.append("v_mfma_f32_16x16x32_bf16 v[%d:%d], v[%d:%d], v[%d:%d], v[%d:%d]"%(c,c+3,F,F+3,F+4+ct*4,F+4+ct*4+3,c,c+3))
        return L
    a("s_waitcnt vmcnt(%d)"%(4*(PD-1))); a("s_barrier")
    ts(a)
    for l in reads(0,0,0): a(l)
    for t in range(NCH):
        a("s_waitcnt lgkmcnt(0)")
        for l in interleave(mfmas(0), reads(t,1,1), per=3): a(l)
        if t+1<NCH:
            rem=min(NCH-1,t+PD-1)-(t+1)
            a("s_waitcnt vmcnt(%d)"%(4*rem))
        a("s_waitcnt lgkmcnt(0)")
        if t+1<NCH: a("s_barrier")
        d=dma(t+PD) if t+PD<NCH else []
        r=reads(t+1,0,0) if t+1<NCH else []
        fill=d+r
        for l in interleave(mfmas(1), fill, per=3): a(l)
    ts(a)
    return ACC

def gen_k1_epilogue(a, ACC):
    a("s_nop 7"); a("s_nop 1")
    a("s_mov_b32 s40, 0x3fb8aa3b"); a("s_mov_b32 s41, 0x358637bd")
    T=80
    for ct in range(5):
        c=ACC+ct*4
        for j in range(4): a("v_mul_f32 v%d, s40, v%d", T+j, c+j)
        for j in range(4): a("v_min_f32 v%d, 0, v%d", T+j, T+j)
        for j in range(4): a("v_exp_f32 v%d, v%d", T+j, T+j)
        for j in range(4): a("v_max_f32 v%d, 0, v%d", c+j, c+j)
        for j in range(4): a("v_add_f32 v%d, v%d, v%d", c+j, c+j, T+j)
        for j in range(4): a("v_add_f32 v%d, s41, v%d", c+j, c+j)
    a("v_and_b32 v2, 15, v1"); a("v_lshrrev_b32 v3, 4, v1")
    a("v_cmp_le_u32 vcc, 8, v2"); a("s_nop 1")
    c=ACC+7*4
    for j in range(4): a("v_cndmask_b32 v%d, v%d, 1.0, vcc", c+j, c+j)
    PK=84
    for ct in range(8):
        c=ACC+ct*4
        a("v_cvt_pk_bf16_f32 v%d, v%d, v%d", PK+2*ct, c, c+1)
        a("v_cvt_pk_bf16_f32 v%d, v%d, v%d", PK+2*ct+1, c+2, c+3)
    KD=104
    a("s_nop 1")
    for ck in (2,3,4):
        for cv in (5,6,7):
            d=KD+((ck-2)*3+(cv-5))*4
            a("v_mfma_f32_16x16x16_bf16 v[%d:%d], v[%d:%d], v[%d:%d], 0", d,d+3, PK+2*ck,PK+2*ck+1, PK+2*cv,PK+2*cv+1)
    a("s_lshl_b32 s32, s24, 4")
    a("v_lshl_add_u32 v8, v3, 2, s32"); a("v_mul_u32_u24 v8, 80, v8"); a("v_lshl_add_u32 v8, v2, 1, v8")
    for ct in range(2):
        for p in range(2):
            r=PK+2*ct+p; off=2*p*80+32*ct
            a("ds_write_b16 v8, v%d offset:%d", r, off); a("ds_write_b16_d16_hi v8, v%d offset:%d", r, off+80)
    a("v_cmp_gt_u32 vcc, 8, v2"); a("s_and_saveexec_b64 s[36:37], vcc")
    for p in range(2):
        r=PK+4+p; off=2*p*80+64
        a("ds_write_b16 v8, v%d offset:%d", r, off); a("ds_write_b16_d16_hi v8, v%d offset:%d", r, off+80)
    a("s_mov_b64 exec, s[36:37]")
    for it in range(2):
        a("v_add_u32 v10, %d, v1", 64*it)
        a("v_mul_u32_u24 v11, 0x3334, v10"); a("v_lshrrev_b32 v11, 16, v11")
        a("v_mul_u32_u24 v4, 5, v11"); a("v_sub_u32 v4, v10, v4"); a("v_add_u32 v5, s32, v11")
        a("v_mul_u32_u24 v%d, 80, v5", 146+it); a("v_lshl_add_u32 v%d, v4, 4, v%d", 146+it, 146+it)
        a("s_lshl_b32 s33, s25, 7"); a("v_add_u32 v5, s33, v5"); a("v_mul_u32_u24 v5, 1280, v5"); a("v_lshl_add_u32 v5, v4, 4, v5")
        a("s_xor_b32 s33, s26, 1"); a("s_mul_i32 s33, s33, 80"); a("v_add_u32 v%d, s33, v5", 144+it)
    a("s_mul_i32 s33, s24, 9216"); a("s_add_u32 s33, s33, 16384")
    a("v_lshlrev_b32 v9, 2, v3"); a("v_mul_u32_u24 v9, 192, v9"); a("v_lshl_add_u32 v9, v2, 2, v9"); a("v_add_u32 v9, s33, v9")
    a("s_waitcnt lgkmcnt(0)")
    for it in range(2):
        if it==1:
            a("v_cmp_gt_u32 vcc, 16, v1"); a("s_and_saveexec_b64 s[36:37], vcc")
        a("ds_read_b128 v[%d:%d], v%d", 148+4*it, 151+4*it, 146+it)
        if it==1: a("s_mov_b64 exec, s[36:37]")
    for ck in (2,3,4):
        for cv in (5,6,7):
            d=KD+((ck-2)*3+(cv-5))*4
            for j in range(4):
                a("ds_write_b32 v9, v%d offset:%d", d+j, ((ck-2)*16+j)*192+(cv-5)*64)
    a("s_waitcnt lgkmcnt(0)")
    a("s_barrier")
    for it in range(2):
        if it==1:
            a("v_cmp_gt_u32 vcc, 16, v1"); a("s_and_saveexec_b64 s[36:37], vcc")
        a("buffer_store_dwordx4 v[%d:%d], v%d, s[20:23], 0 offen", 148+4*it, 151+4*it, 144+it)
        if it==1: a("s_mov_b64 exec, s[36:37]")
    a("v_cmp_gt_u32 vcc, 160, v0"); a("s_and_saveexec_b64 s[36:37], vcc"); a("s_cbranch_execz K1_FIN")
    a("v_lshrrev_b32 v2, 2, v0"); a("v_and_b32 v3, 3, v0")
    a("v_cmp_le_u32 vcc, 20, v2"); a("s_nop 1"); a("v_cndmask_b32 v8, 0, 1, vcc")
    a("v_add_u32 v9, 8, v2"); a("v_mul_u32_u24 v9, 192, v9")
    a("v_mul_u32_u24 v10, 20, v8"); a("v_mul_u32_u24 v11, 5, v3"); a("v_add_u32 v10, v10, v11")
    a("v_lshl_add_u32 v12, v10, 2, v9"); a("v_add_u32 v12, 16384, v12"); a("v_add_u32 v13, %d, v9", 16384+160)
    for w in range(8):
        for i in range(5):
            a("ds_read_b32 v%d, v12 offset:%d", 48+w*6+i, w*9216+4*i)
        a("ds_read_b32 v%d, v13 offset:%d", 48+w*6+5, w*9216)
    a("s_waitcnt lgkmcnt(0)")
    for st in (4,2,1):
        for w in range(st):
            for i in range(6):
                a("v_add_f32 v%d, v%d, v%d", 48+w*6+i, 48+w*6+i, 48+(w+st)*6+i)
    a("s_lshl_b32 s33, s25, 5"); a("s_lshl_b32 s34, s26, 1"); a("s_add_u32 s33, s33, s34"); a("s_mul_i32 s33, s33, 1600"); a("s_add_u32 s33, s33, 0x%x", WS_KVP)
    a("v_mul_u32_u24 v9, 20, v2"); a("v_add_u32 v9, v9, v11"); a("v_lshl_add_u32 v9, v9, 2, s33")
    for i in range(5):
        a("buffer_store_dword v%d, v9, s[20:23], 0 offen offset:%d", 48+i, 4*i)
    a("s_mul_i32 s33, s25, 2560"); a("s_mul_i32 s34, s26, 160"); a("s_add_u32 s33, s33, s34"); a("s_add_u32 s33, s33, 0x%x", WS_ZP)
    a("v_lshl_add_u32 v9, v2, 2, s33")
    a("v_cmp_eq_u32 vcc, 0, v3"); a("s_and_b64 exec, exec, vcc")
    a("buffer_store_dword v53, v9, s[20:23], 0 offen")
    a.label("K1_FIN")
    a("s_mov_b64 exec, s[36:37]")
    if 'ts' in FL:
        a("s_waitcnt vmcnt(0)"); ts(a); ts_flush(a,20,0x800000)
    a.label("K1_END")
    a("s_endpgm")

def bf16round(a, v, t):
    a("v_cvt_pk_bf16_f32 v%d, v%d, v%d", t, v, v)
    a("v_lshlrev_b32 v%d, 16, v%d", v, t)

def gen_k2(a):
    a.raw(".p2align 8"); a.label("k2_kernel")
    a("s_cmp_ge_u32 s2, 256"); a("s_cbranch_scc1 K2_END")
    ts(a)
    a("s_load_dwordx2 s[4:5], s[0:1], 16")
    a("s_load_dwordx2 s[8:9], s[0:1], 40")
    a("s_lshr_b32 s24, s2, 3"); a("s_and_b32 s25, s2, 7")
    a("v_lshlrev_b32 v1, 2, v0")
    a("v_lshrrev_b32 v2, 8, v0"); a("s_nop 0"); a("v_readfirstlane_b32 s26, v2")
    a("v_and_b32 v10, 255, v0")
    a("s_waitcnt lgkmcnt(0)")
    ts(a)
    srd(a,12,4,D*D*2); srd(a,20,8,WS_END if 'ts' not in FL else 0x1000000)
    for c in range(2):
        for p in range(16):
            a("s_mov_b32 s30, 0x%x", WS_ZP+p*2560+c*2048)
            a("buffer_load_dword v%d, v1, s[20:23], s30 offen", 16+c*16+p)
    a("s_mul_i32 s31, s24, 1600"); a("s_add_u32 s31, s31, 0x%x", WS_KVP)
    for p in range(16):
        a("s_add_u32 s30, s31, 0x%x", p*32*1600)
        a("buffer_load_dword v%d, v1, s[20:23], s30 offen", 48+p)
    a("s_cmp_eq_u32 s26, 0"); a("s_cbranch_scc0 K2_LD_SCALE")
    a("v_mul_u32_u24 v2, 0x667, v10"); a("v_lshrrev_b32 v2, 16, v2"); a("v_mul_u32_u24 v3, 40, v2"); a("v_sub_u32 v3, v10, v3"); a("v_min_u32 v2, 4, v2")
    a("s_mul_i32 s30, s24, %d", 20*1280); a("s_mul_i32 s31, s25, 160"); a("s_add_u32 s30, s30, s31")
    a("v_lshlrev_b32 v4, 2, v3"); a("v_add_u32 v4, s30, v4")
    for e in range(20):
        a("s_mov_b32 s31, %d", e*1280)
        a("buffer_load_dword v%d, v4, s[12:15], s31 offen", 100+e)
    a("s_branch K2_RED")
    a.label("K2_LD_SCALE")
    a("v_lshrrev_b32 v5, 5, v10"); a("s_lshl_b32 s30, s2, 3"); a("v_add_u32 v5, s30, v5"); a("v_mul_u32_u24 v5, 1280, v5")
    a("v_and_b32 v6, 31, v10"); a("v_mul_u32_u24 v7, 40, v6"); a("v_add_u32 v5, v5, v7")
    for i in range(5):
        a("buffer_load_dwordx2 v[%d:%d], v5, s[20:23], 0 offen offset:%d", 120+2*i, 121+2*i, 8*i)
    a.label("K2_RED")
    a("s_waitcnt vmcnt(37)" )
    ts(a)
    a("s_waitcnt vmcnt(5)")
    for c in range(2):
        b=16+c*16
        for st in (8,4,2,1):
            for p in range(st): a("v_add_f32 v%d, v%d, v%d", b+p, b+p, b+p+st)
        bf16round(a,b,8)
    for st in (8,4,2,1):
        for p in range(st): a("v_add_f32 v%d, v%d, v%d", 48+p, 48+p, 48+p+st)
    bf16round(a,48,8)
    a("ds_write_b32 v1, v16")
    a("v_cmp_gt_u32 vcc, 128, v0"); a("s_and_saveexec_b64 s[36:37], vcc"); a("ds_write_b32 v1, v32 offset:2048"); a("s_mov_b64 exec, s[36:37]")
    a("v_cmp_gt_u32 vcc, 400, v0"); a("s_and_saveexec_b64 s[36:37], vcc"); a("ds_write_b32 v1, v48 offset:4096"); a("s_mov_b64 exec, s[36:37]")
    a("s_waitcnt lgkmcnt(0)"); a("s_barrier")
    ts(a)
    a("s_cmp_eq_u32 s26, 0"); a("s_cbranch_scc0 K2_SCALE")
    for i in range(8): a("v_mov_b32 v%d, 0", 140+i)
    a("v_mul_u32_u24 v8, 320, v2")
    for d in range(4):
        for e4 in range(5):
            a("ds_read_b128 v[%d:%d], v8 offset:%d", 160+(d*5+e4)*4, 163+(d*5+e4)*4, 4096+d*80+e4*16)
    a("s_waitcnt vmcnt(0)")
    for e in range(20):
        a("v_lshlrev_b32 v%d, 16, v%d", 16+e, 100+e); a("v_and_b32 v%d, 0xffff0000, v%d", 36+e, 100+e)
    a("s_waitcnt lgkmcnt(0)")
    for d in range(4):
        for e in range(20):
            a("v_fmac_f32 v%d, v%d, v%d", 140+2*d, 160+d*20+e, 16+e); a("v_fmac_f32 v%d, v%d, v%d", 141+2*d, 160+d*20+e, 36+e)
    for d in range(4): a("v_cvt_pk_bf16_f32 v%d, v%d, v%d", 150+d, 140+2*d, 141+2*d)
    a("s_mul_i32 s30, s25, 102400"); a("s_mul_i32 s31, s24, 3200"); a("s_add_u32 s30, s30, s31"); a("s_add_u32 s30, s30, 0x%x", WS_MF)
    a("v_mul_u32_u24 v8, 640, v2"); a("v_lshl_add_u32 v8, v3, 2, v8"); a("v_add_u32 v8, s30, v8")
    a("v_cmp_gt_u32 vcc, 200, v10"); a("s_and_saveexec_b64 s[36:37], vcc")
    for d in range(4): a("buffer_store_dword v%d, v8, s[20:23], 0 offen offset:%d", 150+d, d*160)
    a("s_mov_b64 exec, s[36:37]")
    a("s_branch K2_FIN")
    a.label("K2_SCALE")
    a("v_mul_u32_u24 v8, 80, v6")
    for i in range(5): a("ds_read_b128 v[%d:%d], v8 offset:%d", 160+4*i, 163+4*i, 16*i)
    a("s_waitcnt vmcnt(0)")
    for i in range(10):
        a("v_lshlrev_b32 v%d, 16, v%d", 200+2*i, 120+i); a("v_and_b32 v%d, 0xffff0000, v%d", 201+2*i, 120+i)
    a("s_waitcnt lgkmcnt(0)")
    a("v_mov_b32 v9, 0x358637bd")
    for i in range(20): a("v_fmac_f32 v9, v%d, v%d", 200+i, 160+i)
    a("v_rcp_f32 v9, v9"); a("s_nop 0")
    for i in range(20): a("v_mul_f32 v%d, v9, v%d", 200+i, 200+i)
    for i in range(10): a("v_cvt_pk_bf16_f32 v%d, v%d, v%d", 120+i, 200+2*i, 201+2*i)
    a("v_add_u32 v5, 0x%x, v5", WS_PQS)
    for i in range(5): a("buffer_store_dwordx2 v[%d:%d], v5, s[20:23], 0 offen offset:%d", 120+2*i, 121+2*i, 8*i)
    a.label("K2_FIN")
    if 'ts' in FL:
        a("s_waitcnt vmcnt(0)"); ts(a); ts_flush(a,20,0x800000)
    a.label("K2_END")
    a("s_endpgm")

def gen_k3(a):
    NST=4; STAGE=40960; NCH=5
    a.raw(".p2align 8"); a.label("k3_kernel")
    a("s_cmp_ge_u32 s2, 256"); a("s_cbranch_scc1 K3_END")
    ts(a)
    a("s_load_dwordx2 s[4:5], s[0:1], 24")
    a("s_load_dwordx2 s[8:9], s[0:1], 40")
    a("s_and_b32 s30, s2, 7"); a("s_lshr_b32 s31, s2, 3")
    a("s_lshr_b32 s25, s30, 1"); a("s_lshl_b32 s25, s25, 3"); a("s_and_b32 s32, s31, 7"); a("s_add_u32 s25, s25, s32")
    a("s_and_b32 s26, s30, 1"); a("s_lshl_b32 s26, s26, 2"); a("s_lshr_b32 s32, s31, 3"); a("s_add_u32 s26, s26, s32")
    a("v_lshrrev_b32 v2, 6, v0"); a("v_and_b32 v1, 63, v0"); a("s_nop 0")
    a("v_readfirstlane_b32 s24, v2")
    a("v_lshrrev_b32 v3, 4, v1"); a("v_mul_u32_u24 v2, 1280, v3"); a("v_and_b32 v8, 15, v1")
    for jj in range(4):
        a("v_add_u32 v9, %d, v3", 4*jj); a("v_xor_b32 v9, v8, v9"); a("v_lshl_add_u32 v%d, v9, 4, v2", 4+jj)
    a("s_nop 0")
    a("s_mul_i32 s32, s24, 384")
    a("s_mov_b32 s33, 43691")
    for jj in range(6):
        a("v_add_u32 v14, s32, v1"); a("v_add_u32 v14, %d, v14", 64*jj)
        a("v_mul_lo_u32 v15, v14, s33"); a("v_lshrrev_b32 v15, 19, v15")
        a("v_mul_u32_u24 v16, 12, v15"); a("v_sub_u32 v16, v14, v16")
        a("v_bfe_u32 v17, v15, 3, 1"); a("v_lshlrev_b32 v17, 1, v17"); a("v_xor_b32 v16, v16, v17"); a("v_min_u32 v16, 9, v16")
        a("v_mul_u32_u24 v15, 160, v15"); a("v_lshl_add_u32 v%d, v16, 4, v15", 8+jj)
    a("v_and_b32 v2, 15, v1"); a("v_lshrrev_b32 v3, 4, v1")
    a("s_lshl_b32 s32, s24, 4"); a("v_add_u32 v14, s32, v2"); a("v_lshlrev_b32 v14, 8, v14")
    for ks in range(4):
        a("v_add_u32 v15, %d, v3", 4*ks); a("v_xor_b32 v15, v15, v2"); a("v_lshl_add_u32 v%d, v15, 4, v14", 16+ks)
        a("v_add_u32 v%d, 0x%x, v%d", 20+ks, 2*STAGE, 16+ks)
    a("v_lshrrev_b32 v14, 2, v2"); a("v_lshl_add_u32 v14, v3, 3, v14"); a("v_mul_u32_u24 v14, 192, v14"); a("v_add_u32 v14, 16384, v14")
    a("v_and_b32 v15, 1, v1"); a("v_lshl_add_u32 v14, v15, 3, v14")
    a("v_and_b32 v15, 1, v3"); a("v_lshlrev_b32 v15, 1, v15"); a("v_bfe_u32 v34, v1, 1, 1")
    for ct in range(5):
        a("v_add_u32 v35, %d, v34", 2*ct); a("v_xor_b32 v35, v35, v15"); a("v_lshl_add_u32 v%d, v35, 4, v14", 24+ct)
        a("v_add_u32 v%d, 0x%x, v%d", 29+ct, 2*STAGE, 24+ct)
    a("s_waitcnt lgkmcnt(0)")
    ts(a)
    srd(a,12,4,S*D*2); srd(a,20,8,WS_END if 'ts' not in FL else 0x1000000)
    a("s_lshl_b32 s30, s25, 6"); a("s_lshl_b32 s31, s24, 4"); a("s_add_u32 s30, s30, s31"); a("s_mul_i32 s27, s30, 1280"); a("s_add_u32 s27, s27, 0x%x", WS_PQS)
    a("s_mul_i32 s28, s26, 102400"); a("s_add_u32 s28, s28, 0x%x", WS_MF)
    a("s_lshl_b32 s29, s24, 12"); a("s_mul_i32 s35, s24, 6144")
    ACC=64; FR=(96,120)
    for i in range(20): a("v_mov_b32 v%d, 0", ACC+i)
    def dma(t):
        st=(t%NST)*STAGE; L=[]
        for jj in range(4):
            L.append("s_add_u32 m0, s29, 0x%x"%(st+1024*jj))
            L.append("s_add_u32 s33, s27, 0x%x"%(4*jj*1280+t*256))
            L.append("buffer_load_dwordx4 v%d, s[20:23], s33 offen lds"%(4+jj))
        for jj in range(6):
            L.append("s_add_u32 m0, s35, 0x%x"%(st+16384+1024*jj))
            L.append("s_add_u32 s34, s28, 0x%x"%(t*128*160))
            L.append("buffer_load_dwordx4 v%d, s[20:23], s34 offen lds"%(8+jj))
        return L
    def reads(t,ks,fs):
        st=t%NST; hi=st>>1; so=STAGE*(st&1); F=FR[fs]; L=[]
        L.append("ds_read_b128 v[%d:%d], v%d offset:%d"%(F,F+3,16+4*hi+ks,so))
        for ct in range(5):
            for h in range(2):
                L.append("ds_read_b64_tr_b16 v[%d:%d], v%d offset:%d"%(F+4+ct*4+2*h,F+4+ct*4+2*h+1,24+5*hi+ct,so+6144*ks+768*h))
        return L
    def mfmas(fs):
        F=FR[fs]; L=[]
        for ct in range(5):
            c=ACC+ct*4
            L.append("v_mfma_f32_16x16x32_bf16 v[%d:%d], v[%d:%d], v[%d:%d], v[%d:%d]"%(c,c+3,F,F+3,F+4+ct*4,F+4+ct*4+3,c,c+3))
        return L
    for t in range(4):
        for l in dma(t): a(l)
    a("s_waitcnt vmcnt(30)"); a("s_barrier")
    ts(a)
    for l in reads(0,0,0): a(l)
    step=0
    for t in range(NCH):
        for ks in range(4):
            fs=step&1
            a("s_waitcnt lgkmcnt(0)")
            if ks==3 and t+1<NCH:
                a("s_waitcnt vmcnt(%d)"%(10*(min(NCH-1,t+3)-(t+1)))); a("s_barrier")
            if ks<3: nx=reads(t,ks+1,fs^1)
            elif t+1<NCH: nx=reads(t+1,0,fs^1)
            else: nx=[]
            for l in interleave(mfmas(fs), nx, per=3): a(l)
            if ks==3 and t+4<NCH:
                for l in dma(t+4): a(l)
            step+=1
    ts(a)
    a("s_nop 7"); a("s_nop 1"); a("s_barrier")
    a("v_and_b32 v2, 15, v1"); a("v_lshrrev_b32 v3, 4, v1")
    a("s_lshl_b32 s32, s24, 4")
    a("v_lshl_add_u32 v8, v3, 2, s32"); a("v_mul_u32_u24 v8, 176, v8"); a("v_lshl_add_u32 v8, v2, 1, v8")
    for ct in range(5):
        c=ACC+ct*4
        a("v_cvt_pk_bf16_f32 v%d, v%d, v%d", 96+2*ct, c, c+1)
        a("v_cvt_pk_bf16_f32 v%d, v%d, v%d", 97+2*ct, c+2, c+3)
    for ct in range(5):
        for p in range(2):
            a("ds_write_b16 v8, v%d offset:%d", 96+2*ct+p, 2*p*176+32*ct)
            a("ds_write_b16_d16_hi v8, v%d offset:%d", 96+2*ct+p, (2*p+1)*176+32*ct)
    a("s_waitcnt lgkmcnt(0)")
    for it in range(3):
        a("v_add_u32 v10, %d, v1", 64*it)
        a("v_mul_u32_u24 v11, 0x199a, v10"); a("v_lshrrev_b32 v11, 16, v11")
        a("v_mul_u32_u24 v2, 10, v11"); a("v_sub_u32 v2, v10, v2")
        a("v_add_u32 v3, s32, v11")
        a("v_mul_u32_u24 v8, 176, v3"); a("v_lshl_add_u32 v8, v2, 4, v8")
        if it==2:
            a("v_cmp_gt_u32 vcc, 32, v1"); a("s_and_saveexec_b64 s[36:37], vcc")
        a("ds_read_b128 v[%d:%d], v8", 120+4*it, 123+4*it)
        a("s_lshl_b32 s33, s25, 6"); a("v_add_u32 v3, s33, v3"); a("v_mul_u32_u24 v3, 1280, v3"); a("v_lshl_add_u32 v3, v2, 4, v3")
        a("s_mul_i32 s33, s26, 160"); a("v_add_u32 v%d, s33, v3", 136+it)
        if it==2: a("s_mov_b64 exec, s[36:37]")
    a("s_waitcnt lgkmcnt(0)")
    for it in range(3):
        if it==2:
            a("v_cmp_gt_u32 vcc, 32, v1"); a("s_and_saveexec_b64 s[36:37], vcc")
        a("buffer_store_dwordx4 v[%d:%d], v%d, s[12:15], 0 offen", 120+4*it, 123+4*it, 136+it)
        if it==2: a("s_mov_b64 exec, s[36:37]")
    a("s_waitcnt vmcnt(0)")
    ts(a)
    ts_flush(a,20,0x800000)
    a.label("K3_END")
    a("s_endpgm")

def kd(a, name, vgpr, sgpr=64):
    a.raw(".p2align 6")
    a.raw(".amdhsa_kernel %s"%name)
    a.raw("  .amdhsa_next_free_vgpr %d"%vgpr)
    a.raw("  .amdhsa_next_free_sgpr %d"%sgpr)
    a.raw("  .amdhsa_accum_offset %d"%vgpr)
    a.raw("  .amdhsa_group_segment_fixed_size 0")
    a.raw("  .amdhsa_kernarg_size 48")
    a.raw("  .amdhsa_user_sgpr_count 2")
    a.raw("  .amdhsa_user_sgpr_kernarg_segment_ptr 1")
    a.raw("  .amdhsa_system_sgpr_workgroup_id_x 1")
    a.raw(".end_amdhsa_kernel")

def main():
    a=Asm()
    a.raw("; @launch kernel=k1_kernel grid=(256,1,1) block=(512,1,1) lds=163840")
    a.raw("; @launch kernel=k2_kernel grid=(256,1,1) block=(512,1,1) lds=8192")
    a.raw("; @launch kernel=k3_kernel grid=(256,1,1) block=(256,1,1) lds=163840")
    a.raw('.amdgcn_target "amdgcn-amd-amdhsa--gfx950"')
    a.raw(".text")
    ACC=gen_k1(a)
    if 'noepi' in FL:
        a.label('K1_END'); a('s_endpgm')
    else: gen_k1_epilogue(a,ACC)
    gen_k2(a); gen_k3(a)
    a.raw('.section .rodata,"a"')
    kd(a,"k1_kernel",256 if 'ts' in FL else 160, 96); kd(a,"k2_kernel",256 if "ts" in FL else 248, 96); kd(a,"k3_kernel",256 if "ts" in FL else 144, 96)
    open(sys.argv[1],"w").write(a.text())
main()
```

```python
import sys,os
FL=os.environ.get('FL','')

class Asm:
    def __init__(self):
        self.lines=[]
    def __call__(self, s, *a):
        t=(s % a if a else s)
        import re
        for ln in t.split("\n"):
            m=re.search(r"offset:(\d+)",ln)
            if m:
                o=int(m.group(1))
                assert o<=(4095 if ln.strip().startswith("buffer") else 65535), ln
        self.lines.append("    "+t)
    def label(self, l):
        self.lines.append(l+":")
    def raw(self, s):
        self.lines.append(s)
    def text(self):
        return "\n".join(self.lines)+"\n"

def interleave(main, fill, start=0, per=1):
    out=[]; fi=0
    for i,m in enumerate(main):
        out.append(m)
        if i>=start:
            for _ in range(per):
                if fi<len(fill):
                    out.append(fill[fi]); fi+=1
    out+=fill[fi:]
    return out

S,D=2048,640
WS_PQ   = 0
WS_PQS  = WS_PQ + S*D*2
WS_MF   = WS_PQS + S*D*2
WS_KVP  = WS_MF + D*D*2
WS_ZP   = WS_KVP + 16*32*400*4
WS_END  = WS_ZP + 16*640*4

TSN=[0]
def ts(a):
    if 'ts' not in FL: return
    i=TSN[0]; TSN[0]+=1
    a("s_memrealtime s[%d:%d]", 60+2*i, 61+2*i)
def ts_flush(a, srdreg, off):
    if 'ts' not in FL: return
    a("s_waitcnt lgkmcnt(0)")
    n=TSN[0]
    a("v_mov_b32 v250, 0")
    for i in range(n):
        a("v_mov_b32 v251, s%d", 60+2*i)
        a("s_mul_i32 s59, s2, 64"); a("s_add_u32 s59, s59, 0x%x", off+4*i)
        a("v_cmp_eq_u32 vcc, 0, v0"); a("s_and_saveexec_b64 s[56:57], vcc")
        a("buffer_store_dword v251, v250, s[%d:%d], s59 offen", srdreg, srdreg+3)
        a("s_mov_b64 exec, s[56:57]")
    TSN[0]=0

def srd(a, d, lo, nbytes):
    a("s_mov_b32 s%d, s%d", d, lo)
    a("s_and_b32 s%d, s%d, 0xffff", d+1, lo+1)
    a("s_mov_b32 s%d, 0x%x", d+2, nbytes)
    a("s_mov_b32 s%d, 0x00020000", d+3)

def gen_k1(a):
    NST=5; STAGE=32768; NCH=10; PD=(3 if 'pd3' in FL else 4)
    a.raw(".p2align 8"); a.label("k1_kernel")
    a("s_cmp_ge_u32 s2, 256"); a("s_cbranch_scc1 K1_END")
    ts(a)
    a("s_load_dwordx2 s[4:5], s[0:1], 0")
    a("s_load_dwordx2 s[6:7], s[0:1], 8")
    a("s_load_dwordx2 s[8:9], s[0:1], 40")
    a("s_and_b32 s30, s2, 7"); a("s_lshr_b32 s31, s2, 3")
    a("s_lshr_b32 s25, s30, 1"); a("s_lshl_b32 s25, s25, 2"); a("s_and_b32 s32, s31, 3"); a("s_add_u32 s25, s25, s32")
    a("s_and_b32 s26, s30, 1"); a("s_lshl_b32 s26, s26, 3"); a("s_lshr_b32 s32, s31, 2"); a("s_add_u32 s26, s26, s32")
    a("v_lshrrev_b32 v2, 6, v0"); a("v_and_b32 v1, 63, v0"); a("s_nop 0")
    a("v_readfirstlane_b32 s24, v2")
    a("v_lshrrev_b32 v2, 3, v1"); a("v_mul_u32_u24 v2, 1280, v2"); a("v_lshrrev_b32 v3, 4, v1"); a("v_and_b32 v8, 7, v1")
    a("v_xor_b32 v9, v8, v3"); a("v_lshl_add_u32 v4, v9, 4, v2"); a("v_xor_b32 v9, 4, v9"); a("v_lshl_add_u32 v5, v9, 4, v2")
    a("v_mul_u32_u24 v2, 3840, v3"); a("v_and_b32 v8, 15, v1"); a("v_lshlrev_b32 v9, 1, v3"); a("v_xor_b32 v8, v8, v9")
    a("s_and_b32 s30, s24, 1"); a("s_lshl_b32 s30, s30, 3")
    a("v_xor_b32 v10, s30, v8"); a("v_min_u32 v10, 14, v10")
    a("v_mul_u32_u24 v11, 52, v10"); a("v_lshrrev_b32 v11, 8, v11"); a("v_mul_u32_u24 v11, 1200, v11")
    a("v_lshl_add_u32 v11, v10, 4, v11"); a("v_add_u32 v6, v11, v2")
    a("s_and_b32 s30, s26, 1"); a("s_mul_i32 s30, s30, 80"); a("s_sub_u32 s31, 80, s30")
    a("v_cmp_gt_u32 vcc, 5, v10"); a("v_mov_b32 v11, s31"); a("v_mov_b32 v9, s30"); a("v_cndmask_b32 v11, v9, v11, vcc"); a("v_add_u32 v6, v6, v11")
    a("s_waitcnt lgkmcnt(0)")
    ts(a)
    srd(a,12,4,S*D*2); srd(a,16,6,D*3*D*2); srd(a,20,8,WS_END if 'ts' not in FL else 0x1000000)
    a("s_lshl_b32 s30, s25, 7"); a("s_lshl_b32 s31, s24, 4"); a("s_add_u32 s30, s30, s31"); a("s_mul_i32 s27, s30, 1280")
    a("s_mul_i32 s28, s24, %d", 8*3840); a("s_and_b32 s30, s26, -2"); a("s_mul_i32 s30, s30, 80"); a("s_add_u32 s28, s28, s30")
    a("s_lshl_b32 s29, s24, 11")
    def dma(t):
        st=(t%NST)*STAGE; L=[]
        for jj in range(2):
            L.append("s_add_u32 m0, s29, 0x%x\n    s_add_u32 s33, s27, 0x%x\n    buffer_load_dwordx4 v%d, s[12:15], s33 offen lds"%(st+1024*jj, 8*jj*1280+t*128, 4+jj))
        for jj in range(2):
            L.append("s_add_u32 m0, s29, 0x%x\n    s_add_u32 s34, s28, 0x%x\n    buffer_load_dwordx4 v6, s[16:19], s34 offen lds"%(st+16384+1024*jj, 4*jj*3840+t*64*3840))
        return L
    for t in range(PD):
        for l in dma(t): a(l)
    a("v_and_b32 v2, 15, v1"); a("v_lshrrev_b32 v3, 4, v1")
    a("s_lshl_b32 s32, s24, 4")
    a("v_add_u32 v8, s32, v2"); a("v_lshlrev_b32 v8, 7, v8"); a("v_lshrrev_b32 v9, 1, v2"); a("v_xor_b32 v10, v3, v9")
    a("v_lshl_add_u32 v12, v10, 4, v8"); a("v_xor_b32 v10, 4, v10"); a("v_lshl_add_u32 v13, v10, 4, v8")
    for hi in (1,2):
        a("v_add_u32 v%d, 0x%x, v12", 12+2*hi, hi*65536); a("v_add_u32 v%d, 0x%x, v13", 13+2*hi, hi*65536)
    a("v_lshrrev_b32 v8, 2, v2"); a("v_lshl_add_u32 v9, v3, 3, v8"); a("v_lshlrev_b32 v9, 8, v9"); a("v_add_u32 v9, 16384, v9")
    a("v_and_b32 v10, 1, v1"); a("v_lshl_add_u32 v9, v10, 3, v9")
    a("v_and_b32 v10, 1, v3"); a("v_lshlrev_b32 v10, 3, v10"); a("v_lshl_add_u32 v10, v8, 1, v10")
    a("v_bfe_u32 v11, v1, 1, 1")
    for ct in range(8):
        a("v_add_u32 v2, %d, v11", 2*ct); a("v_xor_b32 v2, v2, v10"); a("v_lshl_add_u32 v%d, v2, 4, v9", 20+ct)
        a("v_add_u32 v%d, 0x10000, v%d", 28+ct, 20+ct); a("v_add_u32 v%d, 0x20000, v%d", 36+ct, 20+ct)
    ACC=48; FR=(80,116)
    for i in range(32): a("v_mov_b32 v%d, 0", ACC+i)
    def reads(t,ks,fs):
        st=t%NST; hi=st>>1; so=(st&1)*STAGE; F=FR[fs]; L=[]
        L.append("ds_read_b128 v[%d:%d], v%d offset:%d"%(F,F+3,12+2*hi+ks,so))
        for ct in range(8):
            for h in range(2):
                L.append("ds_read_b64_tr_b16 v[%d:%d], v%d offset:%d"%(F+4+ct*4+2*h,F+4+ct*4+2*h+1,20+8*hi+ct,so+8192*ks+1024*h))
        return L
    def mfmas(fs):
        F=FR[fs]; L=[]
        for ct in range(8):
            c=ACC+ct*4
            L.append("v_mfma_f32_16x16x32_bf16 v[%d:%d], v[%d:%d], v[%d:%d], v[%d:%d]"%(c,c+3,F,F+3,F+4+ct*4,F+4+ct*4+3,c,c+3))
        return L
    a("s_waitcnt vmcnt(%d)"%(4*(PD-1))); a("s_barrier")
    ts(a)
    for l in reads(0,0,0): a(l)
    for t in range(NCH):
        a("s_waitcnt lgkmcnt(0)")
        for l in interleave(mfmas(0), reads(t,1,1), per=3): a(l)
        if t+1<NCH:
            rem=min(NCH-1,t+PD-1)-(t+1)
            a("s_waitcnt vmcnt(%d)"%(4*rem))
        a("s_waitcnt lgkmcnt(0)")
        if t+1<NCH: a("s_barrier")
        d=dma(t+PD) if t+PD<NCH else []
        r=reads(t+1,0,0) if t+1<NCH else []
        fill=d+r
        for l in interleave(mfmas(1), fill, per=3): a(l)
    ts(a)
    return ACC

def gen_k1_epilogue(a, ACC):
    a("s_nop 7"); a("s_nop 1")
    a("s_mov_b32 s40, 0x3fb8aa3b"); a("s_mov_b32 s41, 0x358637bd")
    T=80
    for ct in range(5):
        c=ACC+ct*4
        for j in range(4): a("v_mul_f32 v%d, s40, v%d", T+j, c+j)
        for j in range(4): a("v_min_f32 v%d, 0, v%d", T+j, T+j)
        for j in range(4): a("v_exp_f32 v%d, v%d", T+j, T+j)
        for j in range(4): a("v_max_f32 v%d, 0, v%d", c+j, c+j)
        for j in range(4): a("v_add_f32 v%d, v%d, v%d", c+j, c+j, T+j)
        for j in range(4): a("v_add_f32 v%d, s41, v%d", c+j, c+j)
    a("v_and_b32 v2, 15, v1"); a("v_lshrrev_b32 v3, 4, v1")
    a("v_cmp_le_u32 vcc, 8, v2"); a("s_nop 1")
    c=ACC+7*4
    for j in range(4): a("v_cndmask_b32 v%d, v%d, 1.0, vcc", c+j, c+j)
    PK=84
    for ct in range(8):
        c=ACC+ct*4
        a("v_cvt_pk_bf16_f32 v%d, v%d, v%d", PK+2*ct, c, c+1)
        a("v_cvt_pk_bf16_f32 v%d, v%d, v%d", PK+2*ct+1, c+2, c+3)
    KD=104
    a("s_nop 1")
    for ck in (2,3,4):
        for cv in (5,6,7):
            d=KD+((ck-2)*3+(cv-5))*4
            a("v_mfma_f32_16x16x16_bf16 v[%d:%d], v[%d:%d], v[%d:%d], 0", d,d+3, PK+2*ck,PK+2*ck+1, PK+2*cv,PK+2*cv+1)
    a("s_lshl_b32 s32, s24, 4")
    a("v_lshl_add_u32 v8, v3, 2, s32"); a("v_mul_u32_u24 v8, 80, v8"); a("v_lshl_add_u32 v8, v2, 1, v8")
    for ct in range(2):
        for p in range(2):
            r=PK+2*ct+p; off=2*p*80+32*ct
            a("ds_write_b16 v8, v%d offset:%d", r, off); a("ds_write_b16_d16_hi v8, v%d offset:%d", r, off+80)
    a("v_cmp_gt_u32 vcc, 8, v2"); a("s_and_saveexec_b64 s[36:37], vcc")
    for p in range(2):
        r=PK+4+p; off=2*p*80+64
        a("ds_write_b16 v8, v%d offset:%d", r, off); a("ds_write_b16_d16_hi v8, v%d offset:%d", r, off+80)
    a("s_mov_b64 exec, s[36:37]")
    for it in range(2):
        a("v_add_u32 v10, %d, v1", 64*it)
        a("v_mul_u32_u24 v11, 0x3334, v10"); a("v_lshrrev_b32 v11, 16, v11")
        a("v_mul_u32_u24 v4, 5, v11"); a("v_sub_u32 v4, v10, v4"); a("v_add_u32 v5, s32, v11")
        a("v_mul_u32_u24 v%d, 80, v5", 146+it); a("v_lshl_add_u32 v%d, v4, 4, v%d", 146+it, 146+it)
        a("s_lshl_b32 s33, s25, 7"); a("v_add_u32 v5, s33, v5"); a("v_mul_u32_u24 v5, 1280, v5"); a("v_lshl_add_u32 v5, v4, 4, v5")
        a("s_xor_b32 s33, s26, 1"); a("s_mul_i32 s33, s33, 80"); a("v_add_u32 v%d, s33, v5", 144+it)
    a("s_mul_i32 s33, s24, 9216"); a("s_add_u32 s33, s33, 16384")
    a("v_lshlrev_b32 v9, 2, v3"); a("v_mul_u32_u24 v9, 192, v9"); a("v_lshl_add_u32 v9, v2, 2, v9"); a("v_add_u32 v9, s33, v9")
    a("s_waitcnt lgkmcnt(0)")
    for it in range(2):
        if it==1:
            a("v_cmp_gt_u32 vcc, 16, v1"); a("s_and_saveexec_b64 s[36:37], vcc")
        a("ds_read_b128 v[%d:%d], v%d", 148+4*it, 151+4*it, 146+it)
        if it==1: a("s_mov_b64 exec, s[36:37]")
    for ck in (2,3,4):
        for cv in (5,6,7):
            d=KD+((ck-2)*3+(cv-5))*4
            for j in range(4):
                a("ds_write_b32 v9, v%d offset:%d", d+j, ((ck-2)*16+j)*192+(cv-5)*64)
    a("s_waitcnt lgkmcnt(0)")
    a("s_barrier")
    for it in range(2):
        if it==1:
            a("v_cmp_gt_u32 vcc, 16, v1"); a("s_and_saveexec_b64 s[36:37], vcc")
        a("buffer_store_dwordx4 v[%d:%d], v%d, s[20:23], 0 offen", 148+4*it, 151+4*it, 144+it)
        if it==1: a("s_mov_b64 exec, s[36:37]")
    a("v_cmp_gt_u32 vcc, 160, v0"); a("s_and_saveexec_b64 s[36:37], vcc"); a("s_cbranch_execz K1_FIN")
    a("v_lshrrev_b32 v2, 2, v0"); a("v_and_b32 v3, 3, v0")
    a("v_cmp_le_u32 vcc, 20, v2"); a("s_nop 1"); a("v_cndmask_b32 v8, 0, 1, vcc")
    a("v_add_u32 v9, 8, v2"); a("v_mul_u32_u24 v9, 192, v9")
    a("v_mul_u32_u24 v10, 20, v8"); a("v_mul_u32_u24 v11, 5, v3"); a("v_add_u32 v10, v10, v11")
    a("v_lshl_add_u32 v12, v10, 2, v9"); a("v_add_u32 v12, 16384, v12"); a("v_add_u32 v13, %d, v9", 16384+160)
    for w in range(8):
        for i in range(5):
            a("ds_read_b32 v%d, v12 offset:%d", 48+w*6+i, w*9216+4*i)
        a("ds_read_b32 v%d, v13 offset:%d", 48+w*6+5, w*9216)
    a("s_waitcnt lgkmcnt(0)")
    for st in (4,2,1):
        for w in range(st):
            for i in range(6):
                a("v_add_f32 v%d, v%d, v%d", 48+w*6+i, 48+w*6+i, 48+(w+st)*6+i)
    a("s_lshl_b32 s33, s25, 5"); a("s_lshl_b32 s34, s26, 1"); a("s_add_u32 s33, s33, s34"); a("s_mul_i32 s33, s33, 1600"); a("s_add_u32 s33, s33, 0x%x", WS_KVP)
    a("v_mul_u32_u24 v9, 20, v2"); a("v_add_u32 v9, v9, v11"); a("v_lshl_add_u32 v9, v9, 2, s33")
    for i in range(5):
        a("buffer_store_dword v%d, v9, s[20:23], 0 offen offset:%d", 48+i, 4*i)
    a("s_mul_i32 s33, s25, 2560"); a("s_mul_i32 s34, s26, 160"); a("s_add_u32 s33, s33, s34"); a("s_add_u32 s33, s33, 0x%x", WS_ZP)
    a("v_lshl_add_u32 v9, v2, 2, s33")
    a("v_cmp_eq_u32 vcc, 0, v3"); a("s_and_b64 exec, exec, vcc")
    a("buffer_store_dword v53, v9, s[20:23], 0 offen")
    a.label("K1_FIN")
    a("s_mov_b64 exec, s[36:37]")
    if 'ts' in FL:
        a("s_waitcnt vmcnt(0)"); ts(a); ts_flush(a,20,0x800000)
    a.label("K1_END")
    a("s_endpgm")

def bf16round(a, v, t):
    a("v_cvt_pk_bf16_f32 v%d, v%d, v%d", t, v, v)
    a("v_lshlrev_b32 v%d, 16, v%d", v, t)

def gen_k2(a):
    a.raw(".p2align 8"); a.label("k2_kernel")
    a("s_cmp_ge_u32 s2, 256"); a("s_cbranch_scc1 K2_END")
    ts(a)
    a("s_load_dwordx2 s[4:5], s[0:1], 16")
    a("s_load_dwordx2 s[8:9], s[0:1], 40")
    a("s_lshr_b32 s24, s2, 3"); a("s_and_b32 s25, s2, 7")
    a("v_lshlrev_b32 v1, 2, v0")
    a("v_lshrrev_b32 v2, 8, v0"); a("s_nop 0"); a("v_readfirstlane_b32 s26, v2")
    a("v_and_b32 v10, 255, v0")
    a("s_waitcnt lgkmcnt(0)")
    ts(a)
    srd(a,12,4,D*D*2); srd(a,20,8,WS_END if 'ts' not in FL else 0x1000000)
    for c in range(2):
        for p in range(16):
            a("s_mov_b32 s30, 0x%x", WS_ZP+p*2560+c*2048)
            a("buffer_load_dword v%d, v1, s[20:23], s30 offen", 16+c*16+p)
    a("s_mul_i32 s31, s24, 1600"); a("s_add_u32 s31, s31, 0x%x", WS_KVP)
    for p in range(16):
        a("s_add_u32 s30, s31, 0x%x", p*32*1600)
        a("buffer_load_dword v%d, v1, s[20:23], s30 offen", 48+p)
    a("s_cmp_eq_u32 s26, 0"); a("s_cbranch_scc0 K2_LD_SCALE")
    a("v_mul_u32_u24 v2, 0x667, v10"); a("v_lshrrev_b32 v2, 16, v2"); a("v_mul_u32_u24 v3, 40, v2"); a("v_sub_u32 v3, v10, v3"); a("v_min_u32 v2, 4, v2")
    a("s_mul_i32 s30, s24, %d", 20*1280); a("s_mul_i32 s31, s25, 160"); a("s_add_u32 s30, s30, s31")
    a("v_lshlrev_b32 v4, 2, v3"); a("v_add_u32 v4, s30, v4")
    for e in range(20):
        a("s_mov_b32 s31, %d", e*1280)
        a("buffer_load_dword v%d, v4, s[12:15], s31 offen", 100+e)
    a("s_waitcnt vmcnt(20)")
    a("s_branch K2_RED")
    a.label("K2_LD_SCALE")
    a("v_lshrrev_b32 v5, 5, v10"); a("s_lshl_b32 s30, s2, 3"); a("v_add_u32 v5, s30, v5"); a("v_mul_u32_u24 v5, 1280, v5")
    a("v_and_b32 v6, 31, v10"); a("v_mul_u32_u24 v7, 40, v6"); a("v_add_u32 v5, v5, v7")
    for i in range(5):
        a("buffer_load_dwordx2 v[%d:%d], v5, s[20:23], 0 offen offset:%d", 120+2*i, 121+2*i, 8*i)
    a("s_waitcnt vmcnt(5)")
    a.label("K2_RED")
    for c in range(2):
        b=16+c*16
        for st in (8,4,2,1):
            for p in range(st): a("v_add_f32 v%d, v%d, v%d", b+p, b+p, b+p+st)
        bf16round(a,b,8)
    for st in (8,4,2,1):
        for p in range(st): a("v_add_f32 v%d, v%d, v%d", 48+p, 48+p, 48+p+st)
    bf16round(a,48,8)
    a("ds_write_b32 v1, v16")
    a("v_cmp_gt_u32 vcc, 128, v0"); a("s_and_saveexec_b64 s[36:37], vcc"); a("ds_write_b32 v1, v32 offset:2048"); a("s_mov_b64 exec, s[36:37]")
    a("v_cmp_gt_u32 vcc, 400, v0"); a("s_and_saveexec_b64 s[36:37], vcc"); a("ds_write_b32 v1, v48 offset:4096"); a("s_mov_b64 exec, s[36:37]")
    a("s_waitcnt lgkmcnt(0)"); a("s_barrier")
    ts(a)
    a("s_cmp_eq_u32 s26, 0"); a("s_cbranch_scc0 K2_SCALE")
    for i in range(8): a("v_mov_b32 v%d, 0", 140+i)
    a("v_mul_u32_u24 v8, 320, v2")
    for d in range(4):
        for e4 in range(5):
            a("ds_read_b128 v[%d:%d], v8 offset:%d", 160+(d*5+e4)*4, 163+(d*5+e4)*4, 4096+d*80+e4*16)
    a("s_waitcnt vmcnt(0)")
    for e in range(20):
        a("v_lshlrev_b32 v%d, 16, v%d", 16+e, 100+e); a("v_and_b32 v%d, 0xffff0000, v%d", 36+e, 100+e)
    a("s_waitcnt lgkmcnt(0)")
    for d in range(4):
        for e in range(20):
            a("v_fmac_f32 v%d, v%d, v%d", 140+2*d, 160+d*20+e, 16+e); a("v_fmac_f32 v%d, v%d, v%d", 141+2*d, 160+d*20+e, 36+e)
    for d in range(4): a("v_cvt_pk_bf16_f32 v%d, v%d, v%d", 150+d, 140+2*d, 141+2*d)
    a("s_mul_i32 s30, s25, 102400"); a("s_mul_i32 s31, s24, 3200"); a("s_add_u32 s30, s30, s31"); a("s_add_u32 s30, s30, 0x%x", WS_MF)
    a("v_mul_u32_u24 v8, 640, v2"); a("v_lshl_add_u32 v8, v3, 2, v8"); a("v_add_u32 v8, s30, v8")
    a("v_cmp_gt_u32 vcc, 200, v10"); a("s_and_saveexec_b64 s[36:37], vcc")
    for d in range(4): a("buffer_store_dword v%d, v8, s[20:23], 0 offen offset:%d", 150+d, d*160)
    a("s_mov_b64 exec, s[36:37]")
    a("s_branch K2_FIN")
    a.label("K2_SCALE")
    a("v_mul_u32_u24 v8, 80, v6")
    for i in range(5): a("ds_read_b128 v[%d:%d], v8 offset:%d", 160+4*i, 163+4*i, 16*i)
    a("s_waitcnt vmcnt(0)")
    for i in range(10):
        a("v_lshlrev_b32 v%d, 16, v%d", 200+2*i, 120+i); a("v_and_b32 v%d, 0xffff0000, v%d", 201+2*i, 120+i)
    a("s_waitcnt lgkmcnt(0)")
    a("v_mov_b32 v9, 0x358637bd")
    for i in range(20): a("v_fmac_f32 v9, v%d, v%d", 200+i, 160+i)
    a("v_rcp_f32 v9, v9"); a("s_nop 0")
    for i in range(20): a("v_mul_f32 v%d, v9, v%d", 200+i, 200+i)
    for i in range(10): a("v_cvt_pk_bf16_f32 v%d, v%d, v%d", 120+i, 200+2*i, 201+2*i)
    a("v_add_u32 v5, 0x%x, v5", WS_PQS)
    for i in range(5): a("buffer_store_dwordx2 v[%d:%d], v5, s[20:23], 0 offen offset:%d", 120+2*i, 121+2*i, 8*i)
    a.label("K2_FIN")
    if 'ts' in FL:
        a("s_waitcnt vmcnt(0)"); ts(a); ts_flush(a,20,0x800000)
    a.label("K2_END")
    a("s_endpgm")

def gen_k3(a):
    NST=4; STAGE=40960; NCH=5
    a.raw(".p2align 8"); a.label("k3_kernel")
    a("s_cmp_ge_u32 s2, 256"); a("s_cbranch_scc1 K3_END")
    ts(a)
    a("s_load_dwordx2 s[4:5], s[0:1], 24")
    a("s_load_dwordx2 s[8:9], s[0:1], 40")
    a("s_and_b32 s30, s2, 7"); a("s_lshr_b32 s31, s2, 3")
    a("s_lshr_b32 s25, s30, 1"); a("s_lshl_b32 s25, s25, 3"); a("s_and_b32 s32, s31, 7"); a("s_add_u32 s25, s25, s32")
    a("s_and_b32 s26, s30, 1"); a("s_lshl_b32 s26, s26, 2"); a("s_lshr_b32 s32, s31, 3"); a("s_add_u32 s26, s26, s32")
    a("v_lshrrev_b32 v2, 6, v0"); a("v_and_b32 v1, 63, v0"); a("s_nop 0")
    a("v_readfirstlane_b32 s24, v2")
    a("v_lshrrev_b32 v3, 4, v1"); a("v_mul_u32_u24 v2, 1280, v3"); a("v_and_b32 v8, 15, v1")
    for jj in range(4):
        a("v_add_u32 v9, %d, v3", 4*jj); a("v_xor_b32 v9, v8, v9"); a("v_lshl_add_u32 v%d, v9, 4, v2", 4+jj)
    a("s_nop 0")
    a("s_mul_i32 s32, s24, 384")
    a("s_mov_b32 s33, 43691")
    for jj in range(6):
        a("v_add_u32 v14, s32, v1"); a("v_add_u32 v14, %d, v14", 64*jj)
        a("v_mul_lo_u32 v15, v14, s33"); a("v_lshrrev_b32 v15, 19, v15")
        a("v_mul_u32_u24 v16, 12, v15"); a("v_sub_u32 v16, v14, v16")
        a("v_bfe_u32 v17, v15, 3, 1"); a("v_lshlrev_b32 v17, 1, v17"); a("v_xor_b32 v16, v16, v17"); a("v_min_u32 v16, 9, v16")
        a("v_mul_u32_u24 v15, 160, v15"); a("v_lshl_add_u32 v%d, v16, 4, v15", 8+jj)
    a("v_and_b32 v2, 15, v1"); a("v_lshrrev_b32 v3, 4, v1")
    a("s_lshl_b32 s32, s24, 4"); a("v_add_u32 v14, s32, v2"); a("v_lshlrev_b32 v14, 8, v14")
    for ks in range(4):
        a("v_add_u32 v15, %d, v3", 4*ks); a("v_xor_b32 v15, v15, v2"); a("v_lshl_add_u32 v%d, v15, 4, v14", 16+ks)
        a("v_add_u32 v%d, 0x%x, v%d", 20+ks, 2*STAGE, 16+ks)
    a("v_lshrrev_b32 v14, 2, v2"); a("v_lshl_add_u32 v14, v3, 3, v14"); a("v_mul_u32_u24 v14, 192, v14"); a("v_add_u32 v14, 16384, v14")
    a("v_and_b32 v15, 1, v1"); a("v_lshl_add_u32 v14, v15, 3, v14")
    a("v_and_b32 v15, 1, v3"); a("v_lshlrev_b32 v15, 1, v15"); a("v_bfe_u32 v34, v1, 1, 1")
    for ct in range(5):
        a("v_add_u32 v35, %d, v34", 2*ct); a("v_xor_b32 v35, v35, v15"); a("v_lshl_add_u32 v%d, v35, 4, v14", 24+ct)
        a("v_add_u32 v%d, 0x%x, v%d", 29+ct, 2*STAGE, 24+ct)
    a("s_waitcnt lgkmcnt(0)")
    ts(a)
    srd(a,12,4,S*D*2); srd(a,20,8,WS_END if 'ts' not in FL else 0x1000000)
    a("s_lshl_b32 s30, s25, 6"); a("s_lshl_b32 s31, s24, 4"); a("s_add_u32 s30, s30, s31"); a("s_mul_i32 s27, s30, 1280"); a("s_add_u32 s27, s27, 0x%x", WS_PQS)
    a("s_mul_i32 s28, s26, 102400"); a("s_add_u32 s28, s28, 0x%x", WS_MF)
    a("s_lshl_b32 s29, s24, 12"); a("s_mul_i32 s35, s24, 6144")
    ACC=64; FR=(96,120)
    for i in range(20): a("v_mov_b32 v%d, 0", ACC+i)
    def dma(t):
        st=(t%NST)*STAGE; L=[]
        for jj in range(4):
            L.append("s_add_u32 m0, s29, 0x%x"%(st+1024*jj))
            L.append("s_add_u32 s33, s27, 0x%x"%(4*jj*1280+t*256))
            L.append("buffer_load_dwordx4 v%d, s[20:23], s33 offen lds"%(4+jj))
        for jj in range(6):
            L.append("s_add_u32 m0, s35, 0x%x"%(st+16384+1024*jj))
            L.append("s_add_u32 s34, s28, 0x%x"%(t*128*160))
            L.append("buffer_load_dwordx4 v%d, s[20:23], s34 offen lds"%(8+jj))
        return L
    def reads(t,ks,fs):
        st=t%NST; hi=st>>1; so=STAGE*(st&1); F=FR[fs]; L=[]
        L.append("ds_read_b128 v[%d:%d], v%d offset:%d"%(F,F+3,16+4*hi+ks,so))
        for ct in range(5):
            for h in range(2):
                L.append("ds_read_b64_tr_b16 v[%d:%d], v%d offset:%d"%(F+4+ct*4+2*h,F+4+ct*4+2*h+1,24+5*hi+ct,so+6144*ks+768*h))
        return L
    def mfmas(fs):
        F=FR[fs]; L=[]
        for ct in range(5):
            c=ACC+ct*4
            L.append("v_mfma_f32_16x16x32_bf16 v[%d:%d], v[%d:%d], v[%d:%d], v[%d:%d]"%(c,c+3,F,F+3,F+4+ct*4,F+4+ct*4+3,c,c+3))
        return L
    for t in range(4):
        for l in dma(t): a(l)
    a("s_waitcnt vmcnt(30)"); a("s_barrier")
    ts(a)
    for l in reads(0,0,0): a(l)
    step=0
    for t in range(NCH):
        for ks in range(4):
            fs=step&1
            a("s_waitcnt lgkmcnt(0)")
            if ks==3 and t+1<NCH:
                a("s_waitcnt vmcnt(%d)"%(10*(min(NCH-1,t+3)-(t+1)))); a("s_barrier")
            if ks<3: nx=reads(t,ks+1,fs^1)
            elif t+1<NCH: nx=reads(t+1,0,fs^1)
            else: nx=[]
            for l in interleave(mfmas(fs), nx, per=3): a(l)
            if ks==3 and t+4<NCH:
                for l in dma(t+4): a(l)
            step+=1
    ts(a)
    a("s_nop 7"); a("s_nop 1"); a("s_barrier")
    a("v_and_b32 v2, 15, v1"); a("v_lshrrev_b32 v3, 4, v1")
    a("s_lshl_b32 s32, s24, 4")
    a("v_lshl_add_u32 v8, v3, 2, s32"); a("v_mul_u32_u24 v8, 176, v8"); a("v_lshl_add_u32 v8, v2, 1, v8")
    for ct in range(5):
        c=ACC+ct*4
        a("v_cvt_pk_bf16_f32 v%d, v%d, v%d", 96+2*ct, c, c+1)
        a("v_cvt_pk_bf16_f32 v%d, v%d, v%d", 97+2*ct, c+2, c+3)
    for ct in range(5):
        for p in range(2):
            a("ds_write_b16 v8, v%d offset:%d", 96+2*ct+p, 2*p*176+32*ct)
            a("ds_write_b16_d16_hi v8, v%d offset:%d", 96+2*ct+p, (2*p+1)*176+32*ct)
    a("s_waitcnt lgkmcnt(0)")
    for it in range(3):
        a("v_add_u32 v10, %d, v1", 64*it)
        a("v_mul_u32_u24 v11, 0x199a, v10"); a("v_lshrrev_b32 v11, 16, v11")
        a("v_mul_u32_u24 v2, 10, v11"); a("v_sub_u32 v2, v10, v2")
        a("v_add_u32 v3, s32, v11")
        a("v_mul_u32_u24 v8, 176, v3"); a("v_lshl_add_u32 v8, v2, 4, v8")
        if it==2:
            a("v_cmp_gt_u32 vcc, 32, v1"); a("s_and_saveexec_b64 s[36:37], vcc")
        a("ds_read_b128 v[%d:%d], v8", 120+4*it, 123+4*it)
        a("s_lshl_b32 s33, s25, 6"); a("v_add_u32 v3, s33, v3"); a("v_mul_u32_u24 v3, 1280, v3"); a("v_lshl_add_u32 v3, v2, 4, v3")
        a("s_mul_i32 s33, s26, 160"); a("v_add_u32 v%d, s33, v3", 136+it)
        if it==2: a("s_mov_b64 exec, s[36:37]")
    a("s_waitcnt lgkmcnt(0)")
    for it in range(3):
        if it==2:
            a("v_cmp_gt_u32 vcc, 32, v1"); a("s_and_saveexec_b64 s[36:37], vcc")
        a("buffer_store_dwordx4 v[%d:%d], v%d, s[12:15], 0 offen", 120+4*it, 123+4*it, 136+it)
        if it==2: a("s_mov_b64 exec, s[36:37]")
    a("s_waitcnt vmcnt(0)")
    ts(a)
    ts_flush(a,20,0x800000)
    a.label("K3_END")
    a("s_endpgm")

def kd(a, name, vgpr, sgpr=64):
    a.raw(".p2align 6")
    a.raw(".amdhsa_kernel %s"%name)
    a.raw("  .amdhsa_next_free_vgpr %d"%vgpr)
    a.raw("  .amdhsa_next_free_sgpr %d"%sgpr)
    a.raw("  .amdhsa_accum_offset %d"%vgpr)
    a.raw("  .amdhsa_group_segment_fixed_size 0")
    a.raw("  .amdhsa_kernarg_size 48")
    a.raw("  .amdhsa_user_sgpr_count 2")
    a.raw("  .amdhsa_user_sgpr_kernarg_segment_ptr 1")
    a.raw("  .amdhsa_system_sgpr_workgroup_id_x 1")
    a.raw(".end_amdhsa_kernel")

def main():
    a=Asm()
    a.raw("; @launch kernel=k1_kernel grid=(256,1,1) block=(512,1,1) lds=163840")
    a.raw("; @launch kernel=k2_kernel grid=(256,1,1) block=(512,1,1) lds=8192")
    a.raw("; @launch kernel=k3_kernel grid=(256,1,1) block=(256,1,1) lds=163840")
    a.raw('.amdgcn_target "amdgcn-amd-amdhsa--gfx950"')
    a.raw(".text")
    ACC=gen_k1(a)
    if 'noepi' in FL:
        a.label('K1_END'); a('s_endpgm')
    else: gen_k1_epilogue(a,ACC)
    gen_k2(a); gen_k3(a)
    a.raw('.section .rodata,"a"')
    kd(a,"k1_kernel",256 if 'ts' in FL else 160, 96); kd(a,"k2_kernel",256 if "ts" in FL else 248, 96); kd(a,"k3_kernel",256 if "ts" in FL else 144, 96)
    open(sys.argv[1],"w").write(a.text())
main()
```
